```python
import torch

def _softmax(x, axis=-1):
    return torch.softmax(x, dim=axis)
def _gelu(x):
    return torch.nn.functional.gelu(x, approximate="tanh")
def _silu(x):
    return torch.nn.functional.silu(x)
def _sigmoid(x):
    return torch.sigmoid(x)
def _layernorm(x, axis=-1, eps=1e-5):
    m = x.mean(dim=axis, keepdim=True)
    v = x.var(dim=axis, keepdim=True, unbiased=False)
    return (x - m) / torch.sqrt(v + eps)
def _scatter_add(tgt, idx, src, axis=0):
    return tgt.clone().index_add_(axis, idx, src)
def _segment_sum(src, seg, n):
    out = torch.zeros((n,) + src.shape[1:], dtype=src.dtype)
    return out.index_add_(0, seg, src)
def _pad(x, pw):
    flat = tuple(v for pair in reversed(pw) for v in pair)
    return torch.nn.functional.pad(x, flat)

kernel_name = 'gated_mix__grouped_kv_mqa__glu_gated_geglu__prompt'

def setup_inputs():

    _w = (lambda a: (lambda t: t.to(torch.bfloat16) if t.is_floating_point() else t)(torch.as_tensor(a)))
    def _A_setup():
        B, S, D, H = 1, 2048, 512, 32
        Dh = D // H
        return {
            "x": _w((lambda *s: torch.randn(*s, dtype=torch.bfloat16) * 0.05)(B, S, D)),
            "wq": _w((lambda *s: torch.randn(*s, dtype=torch.bfloat16) * 0.8)(D, H * Dh)),
            "wk": _w((lambda *s: torch.randn(*s, dtype=torch.bfloat16) * 0.8)(D, Dh)),
            "wv": _w((lambda *s: torch.randn(*s, dtype=torch.bfloat16) * 0.05)(D, Dh)),
            "wo": _w((lambda *s: torch.randn(*s, dtype=torch.bfloat16) * 0.05)(H * Dh, D)),
        }
    _A_in = _A_setup()

    def _B_setup():
        B, S, Dm, Df = 1, 2048, 512, 1376
        return {
            "x": _w((lambda *s: torch.randn(*s, dtype=torch.bfloat16) * 0.05)(B, S, Dm)),
            "w_gate": _w((lambda *s: torch.randn(*s, dtype=torch.bfloat16) * 0.8)(Dm, Df) * (Dm ** -0.5)),
            "w_up": _w((lambda *s: torch.randn(*s, dtype=torch.bfloat16) * 0.8)(Dm, Df) * (Dm ** -0.5)),
            "w_down": _w((lambda *s: torch.randn(*s, dtype=torch.bfloat16) * 0.8)(Df, Dm) * (Df ** -0.5)),
        }
    _B_in = _B_setup()

    return {
        "A_x": _A_in["x"],
        "A_wq": _A_in["wq"],
        "A_wk": _A_in["wk"],
        "A_wv": _A_in["wv"],
        "A_wo": _A_in["wo"],
        "B_x": _B_in["x"],
        "B_w_gate": _B_in["w_gate"],
        "B_w_up": _B_in["w_up"],
        "B_w_down": _B_in["w_down"],
        "gate_w": _w((lambda *s: torch.randn(*s, dtype=torch.bfloat16) * 0.05)(512) * 16.0),
    }

def reference(A_x, A_wq, A_wk, A_wv, A_wo, B_x, B_w_gate, B_w_up, B_w_down, gate_w):
    def _A_ref(x, wq, wk, wv, wo):
        B, S, D = x.shape
        H = 32
        Dh = D // H
        q = (lambda x, *d: x.permute(*d))((x @ wq).reshape(B, S, H, Dh), 0, 2, 1, 3)
        k = x @ wk
        v = x @ wv
        scores = torch.einsum("bhqd,bkd->bhqk", q, k) * (Dh ** -0.5)
        p = _softmax(scores, axis=-1)
        o = torch.einsum("bhqk,bkd->bhqd", p, v)
        return (lambda x, *d: x.permute(*d))(o, 0, 2, 1, 3).reshape(B, S, H * Dh) @ wo

    def _B_ref(x, w_gate, w_up, w_down):
        g = torch.einsum("bsd,df->bsf", x, w_gate)
        u = torch.einsum("bsd,df->bsf", x, w_up)
        h = _gelu(g) * u
        return torch.einsum("bsf,fd->bsd", h, w_down)

    x = A_x
    g = _sigmoid((x * gate_w).sum(-1, keepdims=True))
    a = _A_ref(x, A_wq, A_wk, A_wv, A_wo)
    b = _B_ref(x, B_w_gate, B_w_up, B_w_down)
    return g * a + (1 - g) * b
```

```python
import re


def vr(a, n=1):
    return f"v{a}" if n == 1 else f"v[{a}:{a+n-1}]"


def sr(a, n=1):
    return f"s{a}" if n == 1 else f"s[{a}:{a+n-1}]"


class Em:
    def __init__(self):
        self.lines = []
        self.vm = []
        self.uid = 0

    def __call__(self, s):
        for ln in s.split("\n"):
            ln = ln.strip()
            if ln:
                self.lines.append(ln)

    def label(self, name):
        self.lines.append(name + ":")

    def newlabel(self, base):
        self.uid += 1
        return f"L_{base}_{self.uid}"

    def comment(self, s):
        self.lines.append("; " + s)

    def vmop(self, instr, label=None):
        self(instr)
        self.vm.append(label)
        assert len(self.vm) <= 63, "too many outstanding vm ops"

    def wait_vm(self, label):
        idx = [i for i, l in enumerate(self.vm) if l == label]
        if not idx:
            return
        n = len(self.vm) - 1 - idx[-1]
        self(f"s_waitcnt vmcnt({n})")
        self.vm = self.vm[idx[-1] + 1:]

    def wait_vm_all(self):
        self("s_waitcnt vmcnt(0)")
        self.vm = []

    def text(self):
        out = []
        for ln in self.lines:
            if ln.endswith(":") or ln.startswith(".") or ln.startswith(";"):
                out.append(ln)
            else:
                out.append("    " + ln)
        return "\n".join(out) + "\n"


_REG = re.compile(r"^(-|\|)?([vsa])(\d+)\|?$|^(-|\|)?([vsa])\[(\d+):(\d+)\]\|?$")
TRANS = ("v_exp_f32", "v_log_f32", "v_rcp_f32", "v_rsq_f32", "v_sqrt_f32", "v_sin_f32", "v_cos_f32")


def regs_of(tok):
    tok = tok.strip()
    m = _REG.match(tok)
    if not m:
        if tok in ("vcc", "exec", "m0"):
            return {tok}
        return set()
    if m.group(2):
        return {(m.group(2), int(m.group(3)))}
    return {(m.group(5), i) for i in range(int(m.group(6)), int(m.group(7)) + 1)}


class I:
    def __init__(self, text):
        self.text = text
        t = text.split(";")[0].strip()
        parts = t.split(None, 1)
        self.op = parts[0]
        ops = []
        if len(parts) > 1:
            cur = ""
            depth = 0
            for ch in parts[1]:
                if ch == "[":
                    depth += 1
                if ch == "]":
                    depth -= 1
                if ch == "," and depth == 0:
                    ops.append(cur.strip())
                    cur = ""
                else:
                    cur += ch
            ops.append(cur.strip())
            ops[-1] = ops[-1].split()[0] if ops[-1] else ""
        self.ops = ops
        op = self.op
        self.mfma = op.startswith("v_mfma")
        self.valu = op.startswith("v_") and not self.mfma
        self.trans = any(op.startswith(x) for x in TRANS)
        self.ds = op.startswith("ds_")
        self.vmem = op.startswith("buffer_") or op.startswith("global_")
        self.salu = op.startswith("s_")
        self.lds_dma = self.vmem and " lds" in t
        w, r = set(), set()
        R = [regs_of(o) for o in ops]
        if self.mfma:
            w = R[0]
            self.A, self.B, self.C = R[1], R[2], R[3]
            r = R[1] | R[2] | R[3]
            self.passes = 8 if "32x32" in op else 4
        elif self.valu:
            if op.startswith("v_cmp"):
                w = R[0]
                for x in R[1:]:
                    r |= x
            elif op.startswith("v_permlane"):
                w = R[0] | R[1]
                r = R[0] | R[1]
            elif op.startswith("v_readfirstlane") or op.startswith("v_readlane"):
                w = R[0]
                r = R[1]
            elif "_co_" in op:
                w = R[0] | R[1]
                for x in R[2:]:
                    r |= x
            else:
                w = R[0]
                for x in R[1:]:
                    r |= x
                if op.startswith("v_fmac") or op.startswith("v_dot2c"):
                    r |= R[0]
                if op.startswith("v_cndmask") and len(ops) == 3:
                    r |= {"vcc"}
        elif self.ds:
            if op.startswith("ds_read") or "_rtn" in op or "permute" in op:
                w = R[0]
                for x in R[1:]:
                    r |= x
            else:
                for x in R:
                    r |= x
        elif self.vmem:
            if "store" in op or "atomic" in op or self.lds_dma:
                for x in R:
                    r |= x
                if self.lds_dma:
                    r |= {"m0"}
            else:
                w = R[0]
                for x in R[1:]:
                    r |= x
        elif self.salu:
            if op.startswith("s_cmp") or op.startswith("s_cbranch") or op.startswith("s_waitcnt") or op in (
                "s_nop", "s_barrier", "s_setprio", "s_sleep", "s_branch", "s_endpgm"):
                for x in R:
                    r |= x
            else:
                w = R[0] if R else set()
                for x in R[1:]:
                    r |= x
        self.w, self.r = w, r
        self.states = 1
        if op == "s_nop":
            self.states = int(ops[0]) + 1
        self.wide_store = self.vmem and ("store" in op) and ("x4" in op or "x3" in op)
        if self.wide_store:
            self.sdata = R[0]


def vgprs(s):
    return {x for x in s if isinstance(x, tuple) and x[0] in "va"}


def sgprs(s):
    return {x for x in s if (isinstance(x, tuple) and x[0] == "s") or x == "vcc"}


def check_seq(instrs, tag=""):
    probs = []
    n = len(instrs)
    for i, p in enumerate(instrs):
        dist = 0
        for k in range(i + 1, min(n, i + 22)):
            c = instrs[k]
            need = 0
            why = ""

            def upd(v, s):
                nonlocal need, why
                if v > need:
                    need, why = v, s

            if p.mfma:
                big = 12 if p.passes == 8 else 8
                D = p.w
                if c.mfma:
                    if D & (c.A | c.B):
                        upd(big, "mfma D -> mfma A/B")
                    if D & c.C and not (D == c.C and c.passes == p.passes):
                        upd(big - 2, "mfma D -> mfma C overlap")
                    if D & c.w and not (D & c.C):
                        if c.passes != p.passes:
                            upd(big, "mfma WAW different shape")
                elif c.valu:
                    if D & (c.r | c.w):
                        upd(big, "mfma D -> valu")
                    if p.C & c.w:
                        upd(7 if p.passes == 8 else 3, "mfma C read -> valu write (WAR)")
                elif c.ds or c.vmem:
                    if D & (c.r | c.w):
                        upd(big, "mfma D -> mem")
            if p.valu:
                pw = vgprs(p.w)
                if c.mfma and pw & c.r:
                    upd(2, "valu -> mfma operand")
                if p.trans and c.valu and not c.trans and pw & c.r:
                    upd(1, "trans -> valu")
                if p.trans and c.mfma and pw & c.r:
                    upd(2, "trans -> mfma")
                if c.valu and c.op.startswith("v_permlane") and pw & c.r:
                    upd(2, "valu -> permlane")
                if c.valu and (c.op.startswith("v_readfirstlane") or c.op.startswith("v_readlane")) and pw & c.r:
                    upd(1, "valu -> readlane")
                if c.valu and "dpp" in c.text and pw & c.r:
                    upd(2, "valu -> dpp")
                ps = sgprs(p.w)
                if ps:
                    if c.vmem and ps & c.r:
                        upd(5, "valu sgpr -> vmem")
                    if c.valu and ps & c.r:
                        upd(2, "valu sgpr -> valu const")
                if p.op.startswith("v_dot2") and (c.valu or c.mfma) and pw & (c.r | c.w):
                    if c.op == p.op and len(c.ops) >= 4 and pw & regs_of(c.ops[3]) and not (pw & (regs_of(c.ops[1]) | regs_of(c.ops[2]))):
                        pass
                    elif c.op == p.op and p.op.startswith("v_dot2c") and not (pw & (regs_of(c.ops[1]) | regs_of(c.ops[2]))):
                        pass
                    else:
                        upd(3, "dot -> other")
            if p.salu and "m0" in p.w and c.lds_dma:
                upd(1, "m0 -> lds dma")
            if p.wide_store and (c.valu or c.mfma) and p.sdata & c.w:
                upd(2, "wide store data WAR")
            if p.wide_store and (c.ds or c.vmem) and p.sdata & c.w:
                upd(1, "wide store data WAR (load)")
            if need > dist:
                probs.append(f"[{tag}] {why}: need {need} have {dist}\n    {p.text}\n    {c.text}")
            dist += c.states
            if dist >= 20:
                break
    return probs


def check_text(lines):
    ins = []
    labels = {}
    for ln in lines:
        if ln.startswith(";") or ln.startswith("."):
            continue
        if ln.endswith(":"):
            labels[ln[:-1]] = len(ins)
            continue
        ins.append(I(ln))
    probs = []
    run = []
    for x in ins:
        run.append(x)
        if x.op in ("s_branch", "s_endpgm", "s_setpc_b64"):
            probs += check_seq(run, "ft")
            run = []
    probs += check_seq(run, "ft")
    for i, x in enumerate(ins):
        if x.op.startswith("s_cbranch") or x.op == "s_branch":
            tgt = labels.get(x.ops[0])
            if tgt is None:
                continue
            pre = ins[max(0, i - 24): i + 1]
            for k in range(len(pre) - 2, -1, -1):
                if pre[k].op in ("s_branch", "s_endpgm"):
                    pre = pre[k + 1:]
                    break
            post = []
            for y in ins[tgt: tgt + 24]:
                post.append(y)
                if y.op in ("s_branch", "s_endpgm"):
                    break
            for pr in check_seq(pre + post, "br " + x.ops[0]):
                probs.append(pr)
    seen = set()
    out = []
    for p in probs:
        key = p.split("]", 1)[1]
        if key not in seen:
            seen.add(key)
            out.append(p)
    return out
```

```python
import sys, struct, math
from asmlib import Em, vr, sr, check_text

NAME = "gated_mix__grouped_kv_mqa__glu_gated_geglu__prompt"
DIAG = "--diag" in sys.argv


def f32(x):
    return "0x%08x" % struct.unpack("<I", struct.pack("<f", x))[0]


WS_EPOCH = 0
WS_FKV = 0x1000
WS_FH = 0x8000
WS_FO = 0x28000
WS_KV = 0x50000
WS_O = 0x100000
WS_H = 0x300000
WS_END = 0x860000
WS_DIAG = 0x900000
WS_SIZE = 0xA00000 if DIAG else WS_END

REG = 32768
SLOT = 6176
UPOFF = 3104
MISC = 24704
QOFF = 29824
GOFF = 31872
R1 = 131072
WKV = R1
WQA = R1 + 16384
GWL = R1 + 28672
SYNC = R1 + 29696
LDS_BYTES = 163840
C_A, C_B, C_Q, C_R = 0, 4, 8, 12
C_W = 16
C_KV = 64
KVT = 2064
KVG = 4 * KVT


def slaboff(q):
    return 4096 * ((q + 6) & 7)


S_WAVE, S_C, S_J, S_W, S_T = 3, 4, 5, 6, 7
SX, SWQ, SKVW, SWO, SWG, SWU, SWD, SGW, SOUT, SWS = 36, 40, 44, 48, 52, 56, 60, 64, 68, 72
S_TAG = 76
S_REG, S_A, S_B, S_SOFF, S_U0, S_CNT, S_RD, S_EXP, S_KOFF, S_IT = 78, 79, 80, 81, 82, 83, 84, 85, 86, 87
S_HB, S_T0, S_UW, S_H21 = 88, 89, 90, 91
S_K2 = 92
S_M0 = 94
S_ST = 98
S_ROLE = 100

LOG2E = 1.4426950408889634
QSCALE = 0.25 * LOG2E
GK1 = -2.0 * math.sqrt(2.0 / math.pi) * LOG2E
GK2 = GK1 * 0.044715


class K(Em):
    def __init__(self):
        super().__init__()
        self.ds = []
        self.cold = []

    def dsop(self, instr, label=None):
        self(instr)
        self.ds.append(label)
        assert len(self.ds) <= 15, "too many outstanding ds ops"

    def wait_ds(self, label):
        idx = [i for i, l in enumerate(self.ds) if l == label]
        if not idx:
            return
        n = len(self.ds) - 1 - idx[-1]
        self(f"s_waitcnt lgkmcnt({n})")
        self.ds = self.ds[idx[-1] + 1:]

    def wait_ds_all(self):
        self("s_waitcnt lgkmcnt(0)")
        self.ds = []

    def dma(self, srd, voff, soff, ldsaddr, label=None, flags="", imm=0, setm0=True):
        if setm0:
            if isinstance(ldsaddr, tuple):
                self(f"s_add_u32 m0, {sr(ldsaddr[0])}, {ldsaddr[1]}")
            else:
                self(f"s_mov_b32 m0, {ldsaddr}")
        o = f" offset:{imm}" if imm else ""
        return (srd, voff, soff, label, flags, o)

    def dma_go(self, d):
        srd, voff, soff, label, flags, o = d
        self.vmop(f"buffer_load_dwordx4 {vr(voff)}, {sr(srd,4)}, {soff} offen{o} {flags} lds", label)

    def stamp(self, idx, vreg):
        if not DIAG:
            return
        self(f"s_memrealtime {sr(S_ST,2)}")
        self("s_waitcnt lgkmcnt(0)")
        self.ds = []
        self("s_getreg_b32 s101, hwreg(HW_REG_MODE)") if False else None
        self(f"v_writelane_b32 {vr(vreg)}, {sr(S_ST)}, {idx}")

    def arrive(self, vsync, vone, off, label=None):
        self.dsop(f"ds_add_u32 {vr(vsync)}, {vr(vone)} offset:{off}", label)

    def poll_issue(self, vsync, vtmp, off, label):
        self.dsop(f"ds_read_b32 {vr(vtmp)}, {vr(vsync)} offset:{off}", label)

    def poll_check(self, vsync, vtmp, off, expected, prio=None):
        ok = self.newlabel("ok")
        spin = self.newlabel("spin")
        if prio:
            self(f"s_setprio {prio[0]}")
        self(f"v_readfirstlane_b32 {sr(S_RD)}, {vr(vtmp)}")
        if prio:
            self(f"s_setprio {prio[1]}")
        self(f"s_cmp_ge_u32 {sr(S_RD)}, {expected}")
        self(f"s_cbranch_scc0 {spin}")
        self.label(ok)
        c = [f"{spin}:", "s_sleep 1", f"ds_read_b32 {vr(vtmp)}, {vr(vsync)} offset:{off}", "s_waitcnt lgkmcnt(0)"]
        if prio:
            c.append(f"s_setprio {prio[0]}")
        c.append(f"v_readfirstlane_b32 {sr(S_RD)}, {vr(vtmp)}")
        if prio:
            c.append(f"s_setprio {prio[1]}")
        c += [f"s_cmp_ge_u32 {sr(S_RD)}, {expected}", f"s_cbranch_scc1 {ok}",
              f"s_sub_u32 {sr(S_CNT)}, {sr(S_CNT)}, 1", f"s_cbranch_scc0 {spin}", f"s_mov_b32 {sr(S_CNT)}, 0",
              f"s_branch {ok}"]
        self.cold += c

    def lds_wait(self, vsync, vtmp, off, expected, prio=None):
        self.poll_issue(vsync, vtmp, off, "poll")
        self.wait_ds("poll")
        self.poll_check(vsync, vtmp, off, expected, prio)

    def gpoll(self, vaddr, vtmp, prio=None, soff="0"):
        top = self.newlabel("gp")
        done = self.newlabel("gpd")
        self.label(top)
        self(f"buffer_load_dwordx2 {vr(vtmp,2)}, {vr(vaddr)}, {sr(SWS,4)}, {soff} offen sc1")
        self("s_waitcnt vmcnt(0)")
        self.vm = []
        if prio:
            self(f"s_setprio {prio[0]}")
        self(f"v_cmp_ne_u64 vcc, {sr(S_TAG,2)}, {vr(vtmp,2)}")
        if prio:
            self(f"s_setprio {prio[1]}")
        self(f"s_cbranch_vccz {done}")
        self(f"s_sub_u32 {sr(S_CNT)}, {sr(S_CNT)}, 1")
        self(f"s_cbranch_scc0 {top}")
        self(f"s_mov_b32 {sr(S_CNT)}, 0")
        self.label(done)

    def flag_store(self, vtag, soff):
        self("s_mov_b64 exec, 1")
        self.vmop(f"buffer_store_dwordx2 {vr(vtag,2)}, off, {sr(SWS,4)}, {soff} sc1", "flag")
        self("s_mov_b64 exec, -1")


def mfma(d, a, b, c=None):
    cc = vr(d, 16) if c is None else c
    return f"v_mfma_f32_32x32x16_bf16 {vr(d,16)}, {vr(a,4)}, {vr(b,4)}, {cc}"


def srd(e, dst, ptr, size):
    e(f"s_mov_b32 {sr(dst)}, {sr(ptr)}")
    e(f"s_mov_b32 {sr(dst+1)}, {sr(ptr+1)}")
    e(f"s_mov_b32 {sr(dst+2)}, {size}")
    e(f"s_mov_b32 {sr(dst+3)}, 0x20000")


V_LANE, V_SYNC, V_ONE, V_TMP, V_L16, V_STAMP = 0, 1, 2, 3, 4, 15
V_TAG = 6


def gen_entry(e):
    e("s_cmp_ge_u32 s2, 256")
    e("s_cbranch_scc1 L_exit")
    e("s_load_dwordx16 s[8:23], s[0:1], 0")
    e("s_load_dwordx8 s[24:31], s[0:1], 64")
    e("s_load_dwordx2 s[32:33], s[0:1], 96")
    e("v_lshrrev_b32 v1, 6, v0")
    e("v_and_b32 v0, 63, v0")
    e(f"v_readfirstlane_b32 {sr(S_WAVE)}, v1")
    if DIAG:
        e(f"v_mov_b32 {vr(V_STAMP)}, 0")
    e(f"s_and_b32 {sr(S_C)}, s2, 7")
    e(f"s_lshl_b32 {sr(S_C)}, {sr(S_C)}, 1")
    e(f"s_lshr_b32 {sr(S_A)}, s2, 7")
    e(f"s_add_u32 {sr(S_C)}, {sr(S_C)}, {sr(S_A)}")
    e(f"s_lshr_b32 {sr(S_J)}, s2, 3")
    e(f"s_and_b32 {sr(S_J)}, {sr(S_J)}, 15")
    e(f"s_and_b32 {sr(S_W)}, {sr(S_WAVE)}, 3")
    e(f"s_lshl_b32 {sr(S_T)}, {sr(S_C)}, 2")
    e(f"s_add_u32 {sr(S_T)}, {sr(S_T)}, {sr(S_W)}")
    e(f"s_lshl_b32 {sr(S_REG)}, {sr(S_W)}, 15")
    e(f"s_mov_b32 {sr(S_CNT)}, 0x200000")
    e(f"v_lshlrev_b32 {vr(V_L16)}, 4, v0")
    e(f"v_lshlrev_b32 {vr(V_TMP)}, 2, v0")
    e(f"v_add_u32 {vr(V_SYNC)}, {SYNC + 128}, {vr(V_TMP)}")
    e(f"v_mov_b32 {vr(V_ONE)}, {SYNC}")
    e("s_mov_b64 exec, 1")
    e(f"v_mov_b32 {vr(V_SYNC)}, {vr(V_ONE)}")
    e("s_mov_b64 exec, -1")
    e(f"v_mov_b32 {vr(V_ONE)}, 1")
    e("s_waitcnt lgkmcnt(0)")
    e.stamp(0, V_STAMP)
    e(f"s_load_dwordx2 {sr(S_TAG,2)}, s[32:33], {WS_EPOCH}")
    srd(e, SX, 8, 2048 * 1024)
    srd(e, SWQ, 10, 512 * 1024)
    e(f"s_and_b32 {sr(S_A)}, {sr(S_J)}, 1")
    e(f"s_cmp_eq_u32 {sr(S_A)}, 0")
    e("s_cselect_b32 s34, s12, s14")
    e("s_cselect_b32 s35, s13, s15")
    srd(e, SKVW, 34, 512 * 32)
    srd(e, SWO, 16, 512 * 1024)
    srd(e, SWG, 20, 512 * 2752)
    srd(e, SWU, 22, 512 * 2752)
    srd(e, SWD, 24, 1376 * 1024)
    srd(e, SGW, 26, 1024)
    srd(e, SOUT, 28, 2048 * 1024)
    srd(e, SWS, 32, WS_SIZE)
    e(f"s_cmp_lt_u32 {sr(S_WAVE)}, 4")
    e("s_cbranch_scc1 L_A")


def finish_tag(e):
    e("s_waitcnt lgkmcnt(0)")
    e.ds = []
    e(f"s_add_u32 {sr(S_TAG)}, {sr(S_TAG)}, 1")
    e(f"s_addc_u32 {sr(S_TAG+1)}, {sr(S_TAG+1)}, 0")
    e("s_barrier")
    e(f"v_mov_b32 {vr(V_TAG)}, {sr(S_TAG)}")
    e(f"v_mov_b32 {vr(V_TAG+1)}, {sr(S_TAG+1)}")


def diag_end(e):
    if not DIAG:
        return
    e(f"s_lshl_b32 {sr(S_A)}, s2, 3")
    e(f"s_add_u32 {sr(S_A)}, {sr(S_A)}, {sr(S_WAVE)}")
    e(f"s_lshl_b32 {sr(S_A)}, {sr(S_A)}, 8")
    e(f"s_add_u32 {sr(S_A)}, {sr(S_A)}, {WS_DIAG}")
    e(f"v_lshlrev_b32 {vr(V_TMP)}, 2, {vr(V_LANE)}")
    e(f"buffer_store_dword {vr(V_STAMP)}, {vr(V_TMP)}, {sr(SWS,4)}, {sr(S_A)} offen")
    e("s_waitcnt vmcnt(0)")


X0 = 128
ACC = 32
WF = 16
V_TR = 8
V_W1S = 10
V_GC = 14
V_GK1 = 12
GPRIO = (2, 0)


def tr_lane_parts(e, vr_r, vr_c8, vr_g, vr_h):
    e(f"v_bfe_u32 {vr(vr_r)}, v0, 2, 2")
    e(f"v_and_b32 {vr(vr_c8)}, 3, v0")
    e(f"v_lshlrev_b32 {vr(vr_c8)}, 3, {vr(vr_c8)}")
    e(f"v_bfe_u32 {vr(vr_g)}, v0, 4, 1")
    e(f"v_lshrrev_b32 {vr(vr_h)}, 5, v0")


def w1_issue(e, g):
    e(f"s_lshl_b32 {sr(S_SOFF)}, {sr(S_W)}, 0")
    e(f"s_add_u32 {sr(S_SOFF)}, {sr(S_SOFF)}, {4*g}")
    e(f"s_mul_i32 {sr(S_SOFF)}, {sr(S_SOFF)}, {16*2752}")
    base = (g & 3) * SLOT
    for m, s in ((0, SWG), (1, SWU)):
        for i in range(3):
            d = e.dma(s, V_W1S + i, sr(S_SOFF), (S_REG, base + m * UPOFF + i * 1024), f"w1_{g}")
            e("s_nop 0")
            e.dma_go(d)


def gen_G(e):
    T = ACC
    vXE, vXO = T + 0, T + 1
    vXR = T + 2
    vWQS = T + 6
    vTKV = T + 7
    vTQ = T + 8
    vGWA = T + 11
    vr_, vc8, vg, vh = T + 12, T + 13, T + 14, T + 15
    QA = T + 16
    KVA = T + 32
    FR = T + 48
    vZ = WF

    e(f"s_lshr_b32 {sr(S_A)}, {sr(S_J)}, 2")
    e(f"s_and_b32 {sr(S_B)}, {sr(S_J)}, 3")
    e(f"s_mov_b32 {sr(S_ROLE)}, 2")
    e(f"s_cmp_lg_u32 {sr(S_A)}, {sr(S_W)}")
    e("s_cbranch_scc1 L_G_role")
    e(f"s_cmp_ge_u32 {sr(S_B)}, 2")
    e("s_cbranch_scc1 L_G_role")
    e(f"s_mov_b32 {sr(S_ROLE)}, 1")
    e(f"s_cmp_eq_u32 {sr(S_B)}, 1")
    e("s_cbranch_scc1 L_G_role")
    e(f"s_mov_b32 {sr(S_ROLE)}, 0")
    e.label("L_G_role")
    e(f"v_lshrrev_b32 {vr(vXE)}, 3, v0")
    e(f"v_lshlrev_b32 {vr(vXE)}, 10, {vr(vXE)}")
    e(f"v_and_b32 {vr(vXO)}, 7, v0")
    e(f"v_lshrrev_b32 {vr(V_TMP)}, 4, v0")
    e(f"v_xor_b32 {vr(vXO)}, {vr(vXO)}, {vr(V_TMP)}")
    e(f"v_lshlrev_b32 {vr(vXO)}, 4, {vr(vXO)}")
    e(f"v_add_u32 {vr(vXE)}, {vr(vXE)}, {vr(vXO)}")
    e(f"v_xor_b32 {vr(vXO)}, 64, {vr(vXE)}")
    e(f"s_cmp_eq_u32 {sr(S_ROLE)}, 2")
    e("s_cbranch_scc1 L_G_nokvw")
    e("s_setprio 3")
    for i4 in range(4):
        e(f"s_mov_b32 m0, {WKV + i4*4096}")
        e(f"s_mov_b32 {sr(S_SOFF)}, {i4*4096}")
        for i in range(4):
            o = f" offset:{i*1024}" if i else ""
            e(f"buffer_load_dwordx4 {vr(V_L16)}, {sr(SKVW,4)}, {sr(S_SOFF)} offen{o} lds")
    e.label("L_G_nokvw")
    e(f"s_lshl_b32 {sr(S_B)}, {sr(S_T)}, 15")
    for q in range(8):
        for i in range(4):
            d = e.dma(SX, vXO if (i & 1) else vXE, sr(S_SOFF), (S_REG, slaboff(q) + i * 1024), f"x{q}")
            e(f"s_add_u32 {sr(S_SOFF)}, {sr(S_B)}, {i*8192 + q*128}")
            e.dma_go(d)
    e("s_setprio 0")
    e(f"v_and_b32 {vr(vr_)}, 31, v0")
    e(f"v_lshrrev_b32 {vr(vh)}, 5, v0")
    e(f"v_bfe_u32 {vr(vg)}, v0, 1, 3")
    e(f"v_lshlrev_b32 {vr(vr_)}, 7, {vr(vr_)}")
    e(f"v_add_u32 {vr(vr_)}, {sr(S_REG)}, {vr(vr_)}")
    for sp in range(4):
        e(f"v_add_u32 {vr(V_TMP)}, {2*sp}, {vr(vh)}")
        e(f"v_xor_b32 {vr(V_TMP)}, {vr(V_TMP)}, {vr(vg)}")
        e(f"v_lshl_add_u32 {vr(vXR+sp)}, {vr(V_TMP)}, 4, {vr(vr_)}")
    e(f"v_lshlrev_b32 {vr(vGWA)}, 4, {vr(vh)}")
    e(f"v_add_u32 {vr(vGWA)}, {GWL}, {vr(vGWA)}")
    e(f"v_lshrrev_b32 {vr(vWQS)}, 2, v0")
    e(f"v_lshlrev_b32 {vr(vWQS)}, 10, {vr(vWQS)}")
    e(f"v_and_b32 {vr(V_TMP)}, 3, v0")
    e(f"v_lshl_add_u32 {vr(vWQS)}, {vr(V_TMP)}, 4, {vr(vWQS)}")
    e(f"s_lshl_b32 {sr(S_A)}, {sr(S_J)}, 6")
    e(f"v_add_u32 {vr(vWQS)}, {sr(S_A)}, {vr(vWQS)}")
    tr_lane_parts(e, vr_, vc8, vg, vh)
    e(f"v_lshl_add_u32 {vr(V_TMP)}, {vr(vh)}, 3, {vr(vr_)}")
    e(f"v_lshl_add_u32 {vr(vTKV)}, {vr(V_TMP)}, 5, {vr(vc8)}")
    e(f"v_add_u32 {vr(vTKV)}, {WKV}, {vr(vTKV)}")
    e(f"v_lshl_add_u32 {vr(vTQ+1)}, {vr(V_TMP)}, 6, {vr(vc8)}")
    e(f"v_lshl_add_u32 {vr(vTQ+1)}, {vr(vg)}, 5, {vr(vTQ+1)}")
    e(f"v_add_u32 {vr(vTQ)}, {WQA}, {vr(vTQ+1)}")
    e(f"v_add_u32 {vr(vTQ+2)}, {2*REG}, {vr(vTQ+1)}")
    e(f"v_mul_u32_u24 {vr(V_TR)}, 192, {vr(V_TMP)}")
    e(f"v_add_u32 {vr(V_TR)}, {vr(V_TR)}, {vr(vc8)}")
    e(f"v_mul_u32_u24 {vr(V_TMP)}, {UPOFF}, {vr(vg)}")
    e(f"v_add_u32 {vr(V_TR)}, {vr(V_TR)}, {vr(V_TMP)}")
    e(f"v_add_u32 {vr(V_TR+1)}, {2*REG}, {vr(V_TR)}")
    e(f"s_mul_i32 {sr(S_A)}, {sr(S_J)}, 43")
    e(f"s_lshr_b32 {sr(S_A)}, {sr(S_A)}, 7")
    e(f"s_mul_i32 {sr(S_B)}, {sr(S_A)}, 3")
    e(f"s_sub_u32 {sr(S_B)}, {sr(S_J)}, {sr(S_B)}")
    e(f"s_mul_i32 {sr(S_B)}, {sr(S_B)}, 6")
    e(f"s_lshl_b32 {sr(S_U0)}, {sr(S_A)}, 4")
    e(f"s_add_u32 {sr(S_U0)}, {sr(S_U0)}, {sr(S_B)}")
    e(f"s_lshl_b32 {sr(S_A)}, {sr(S_U0)}, 5")
    for i in range(3):
        e(f"v_add_u32 {vr(V_TMP)}, {64*i}, v0")
        e(f"v_mul_u32_u24 {vr(vr_)}, 43691, {vr(V_TMP)}")
        e(f"v_lshrrev_b32 {vr(vr_)}, 19, {vr(vr_)}")
        e(f"v_mul_u32_u24 {vr(vc8)}, 12, {vr(vr_)}")
        e(f"v_sub_u32 {vr(vc8)}, {vr(V_TMP)}, {vr(vc8)}")
        e(f"v_mul_u32_u24 {vr(vr_)}, 2752, {vr(vr_)}")
        e(f"v_lshl_add_u32 {vr(vr_)}, {vr(vc8)}, 4, {vr(vr_)}")
        e(f"v_add_u32 {vr(V_W1S+i)}, {sr(S_A)}, {vr(vr_)}")
    finish_tag(e)
    e.stamp(1, V_STAMP)

    def wqb_issue():
        e(f"s_mul_i32 {sr(S_B)}, {sr(S_W)}, 5")
        e(f"s_add_u32 {sr(S_B)}, {sr(S_B)}, 12")
        e(f"s_lshl_b32 {sr(S_B)}, {sr(S_B)}, 14")
        for i in range(5):
            d = e.dma(SWQ, vWQS, sr(S_SOFF), (S_REG, MISC + i * 1024), "wqb")
            e(f"s_add_u32 {sr(S_SOFF)}, {sr(S_B)}, {i*16384}")
            e.dma_go(d)

    def slab_reads(q):
        for sp in range(4):
            e.dsop(f"ds_read_b128 {vr(X0+4*(4*q+sp),4)}, {vr(vXR+sp)} offset:{slaboff(q)}", f"xr{q}")

    vm0 = list(e.vm)
    e(f"s_cmp_eq_u32 {sr(S_ROLE)}, 2")
    e("s_cbranch_scc1 L_G_p1n")
    e(f"s_cmp_eq_u32 {sr(S_ROLE)}, 1")
    e("s_cbranch_scc1 L_G_p1v")
    for which in (0, 1):
        e.vm = list(vm0)
        e.ds = []
        if which == 1:
            e.label("L_G_p1v")
        e.comment("producer of %s" % ("K" if which == 0 else "V"))
        for q in range(8):
            e.wait_vm(f"x{q}")
            fb = FR + 16 * (q & 1)
            slab_reads(q)
            for sp in range(4):
                s = 4 * q + sp
                e.dsop(f"ds_read_b64_tr_b16 {vr(fb+4*sp,2)}, {vr(vTKV)} offset:{s*512}")
                e.dsop(f"ds_read_b64_tr_b16 {vr(fb+4*sp+2,2)}, {vr(vTKV)} offset:{s*512+128}")
            e.wait_ds_all()
            for sp in range(4):
                s = 4 * q + sp
                xa, wa = X0 + 4 * s, fb + 4 * sp
                c = "0" if s == 0 else None
                e(mfma(KVA, wa, xa, c) if which == 0 else mfma(KVA, xa, wa, c))
        e(f"s_lshl_b32 {sr(S_A)}, {sr(S_T)}, 11")
        e(f"s_add_u32 {sr(S_A)}, {sr(S_A)}, {WS_KV + which*1024}")
        if which == 0:
            e("s_nop 9")
            for i in range(4):
                e(f"v_cvt_pk_bf16_f32 {vr(FR+i)}, {vr(KVA+2*i)}, {vr(KVA+2*i+1)}")
            e.vmop(f"buffer_store_dwordx4 {vr(FR,4)}, {vr(V_L16)}, {sr(SWS,4)}, {sr(S_A)} offen sc1", "kvst")
        else:
            e(f"v_and_b32 {vr(FR+8)}, 15, v0")
            e(f"v_lshl_add_u32 {vr(FR+8)}, {vr(vh)}, 4, {vr(FR+8)}")
            e(f"v_lshlrev_b32 {vr(FR+8)}, 4, {vr(FR+8)}")
            e(f"v_lshl_add_u32 {vr(FR+8)}, {vr(vg)}, 9, {vr(FR+8)}")
            e("s_nop 5")
            for i in range(4):
                e(f"v_cvt_pk_bf16_f32 {vr(FR+i)}, {vr(KVA+2*i)}, {vr(KVA+2*i+1)}")
            e("s_mov_b32 exec_lo, 0xffff0000")
            e("s_mov_b32 exec_hi, 0xffff0000")
            for i in range(4):
                e(f"v_cvt_pk_bf16_f32 {vr(FR+i)}, {vr(KVA+8+2*i)}, {vr(KVA+8+2*i+1)}")
            e("s_mov_b64 exec, -1")
            e.vmop(f"buffer_store_dwordx4 {vr(FR,4)}, {vr(FR+8)}, {sr(SWS,4)}, {sr(S_A)} offen sc1", "kvst")
        wqb_issue()
        for g in range(4):
            w1_issue(e, g)
        e(f"s_lshl_b32 {sr(S_A)}, {sr(S_T)}, 8")
        e(f"s_add_u32 {sr(S_A)}, {sr(S_A)}, {WS_FKV + which*128}")
        e.wait_vm("kvst")
        e.flag_store(V_TAG, sr(S_A))
        vm_prod = list(e.vm)
        e("s_branch L_G_p2")
    e.label("L_G_p1n")
    e.vm = list(vm0)
    e.ds = []
    for q in range(8):
        e.wait_vm(f"x{q}")
        slab_reads(q)
        if q == 1:
            e.wait_ds_all()
            wqb_issue()
        if q in (3, 5, 6, 7):
            e.wait_ds_all()
            w1_issue(e, {3: 0, 5: 1, 6: 2, 7: 3}[q])
    e.label("L_G_p2")
    assert [l for l in vm_prod if l != "flag"][-24:] == e.vm[-24:]
    e.vm = ["wqb"] * 5 + e.vm[-24:]
    e.ds = []
    e.stamp(2, V_STAMP)

    for i in range(4):
        e(f"v_mov_b32 {vr(vZ+i)}, 0")
    e.lds_wait(V_SYNC, V_TMP, C_A, 4)

    def q_reads(s):
        fb = FR + 8 * (s % 4)
        if s < 12:
            a, off = vTQ, s * 1024
        else:
            wv, i = divmod(s - 12, 5)
            a, off = (vTQ + 1 if wv < 2 else vTQ + 2), (wv & 1) * REG + MISC + i * 1024
        e.dsop(f"ds_read_b64_tr_b16 {vr(fb,2)}, {vr(a)} offset:{off}")
        e.dsop(f"ds_read_b64_tr_b16 {vr(fb+2,2)}, {vr(a)} offset:{off+256}")
        e.dsop(f"ds_read_b128 {vr(fb+4,4)}, {vr(vGWA)} offset:{s*32}", f"q{s}")

    def q_comp(s):
        fb = FR + 8 * (s % 4)
        e.wait_ds(f"q{s}")
        e(mfma(QA, fb, X0 + 4 * s, "0" if s == 0 else None))
        for i in range(4):
            e(f"v_dot2c_f32_bf16 {vr(vZ+i)}, {vr(X0+4*s+i)}, {vr(fb+4+i)}")

    def q_run(lo, hi):
        for s in range(lo, min(lo + 3, hi)):
            q_reads(s)
        for s in range(lo, hi):
            q_comp(s)
            if s + 3 < hi:
                q_reads(s + 3)

    q_run(0, 12)
    e.wait_vm("wqb")
    e.arrive(V_SYNC, V_ONE, C_B)
    e.lds_wait(V_SYNC, V_TMP, C_B, 4)
    q_run(12, 32)
    e("s_nop 2")
    e(f"v_add_f32 {vr(vZ)}, {vr(vZ)}, {vr(vZ+1)}")
    e(f"v_add_f32 {vr(vZ+2)}, {vr(vZ+2)}, {vr(vZ+3)}")
    e(f"v_add_f32 {vr(vZ)}, {vr(vZ)}, {vr(vZ+2)}")
    e(f"v_mov_b32 {vr(vZ+1)}, {vr(vZ)}")
    e("s_nop 1")
    e(f"v_permlane32_swap_b32 {vr(vZ)}, {vr(vZ+1)}")
    e(f"v_add_f32 {vr(vZ)}, {vr(vZ)}, {vr(vZ+1)}")
    e(f"v_mul_f32 {vr(vZ)}, {f32(LOG2E)}, {vr(vZ)}")
    e(f"v_min_f32 {vr(vZ+1)}, {f32(115.0)}, {vr(vZ)}")
    e(f"v_exp_f32 {vr(vZ+1)}, {vr(vZ+1)}")
    e(f"v_exp_f32 {vr(vZ+2)}, -{vr(vZ)}")
    e(f"v_add_f32 {vr(V_GC)}, 1.0, {vr(vZ+1)}")
    e(f"v_add_f32 {vr(vZ+2)}, 1.0, {vr(vZ+2)}")
    e(f"v_rcp_f32 {vr(vZ+2)}, {vr(vZ+2)}")
    e(f"s_mov_b32 {sr(S_A)}, {f32(QSCALE)}")
    for i in range(16):
        e(f"v_mul_f32 {vr(QA+i)}, {sr(S_A)}, {vr(QA+i)}")
    for i in range(8):
        e(f"v_cvt_pk_bf16_f32 {vr(FR+i)}, {vr(QA+2*i)}, {vr(QA+2*i+1)}")
    e(f"v_add_u32 {vr(V_TMP)}, {sr(S_REG)}, {vr(V_L16)}")
    e.dsop(f"ds_write_b128 {vr(V_TMP)}, {vr(FR,4)} offset:{QOFF}")
    e.dsop(f"ds_write_b128 {vr(V_TMP)}, {vr(FR+4,4)} offset:{QOFF+1024}")
    e(f"v_lshlrev_b32 {vr(vr_)}, 2, v0")
    e(f"v_add_u32 {vr(vr_)}, {sr(S_REG)}, {vr(vr_)}")
    e.dsop(f"ds_write_b32 {vr(vr_)}, {vr(vZ+2)} offset:{GOFF}")
    e.arrive(V_SYNC, V_ONE, C_Q)
    e.stamp(3, V_STAMP)

    e.wait_vm("w1_0")
    e.arrive(V_SYNC, V_ONE, C_W)
    e.lds_wait(V_SYNC, V_TMP, C_W, 4, GPRIO)
    seq = [(s, u) for s in range(32) for u in range(6)]

    def w1_read(n):
        s, u = seq[n]
        fb = WF + 4 * (n % 4)
        rg, sl = s & 3, (s >> 2) & 3
        off = (rg & 1) * REG + sl * SLOT + u * 32
        a = V_TR + (rg >> 1)
        e.dsop(f"ds_read_b64_tr_b16 {vr(fb,2)}, {vr(a)} offset:{off}")
        e.dsop(f"ds_read_b64_tr_b16 {vr(fb+2,2)}, {vr(a)} offset:{off+768}", f"f{n}")

    PD = 3
    for n in range(PD):
        w1_read(n)
    for n, (s, u) in enumerate(seq):
        g = s >> 2
        if (s & 3) == 2 and u == 0 and g + 1 <= 7:
            e.wait_vm(f"w1_{g+1}")
            e.arrive(V_SYNC, V_ONE, C_W + 4 * (g + 1))
        if (s & 3) == 3 and u == 0 and g + 1 <= 7:
            e.poll_issue(V_SYNC, V_TMP, C_W + 4 * (g + 1), "poll")
        e.wait_ds(f"f{n}")
        e(mfma(ACC + 16 * u, WF + 4 * (n % 4), X0 + 4 * s, "0" if s == 0 else None))
        m = n + PD
        if m < len(seq):
            if seq[m][0] >> 2 != g and seq[m][1] == 0:
                e.wait_ds("poll")
                e.poll_check(V_SYNC, V_TMP, C_W + 4 * (g + 1), 4, GPRIO)
                if 4 <= g + 3 <= 7:
                    w1_issue(e, g + 3)
            w1_read(m)
    e.arrive(V_SYNC, V_ONE, C_W + 32)
    e.stamp(4, V_STAMP)

    vWD = 8
    vTD = 10
    e("s_setprio 2")
    e(f"v_bfe_u32 {vr(V_TMP)}, v0, 4, 1")
    e(f"v_lshlrev_b32 {vr(V_TMP)}, 2, {vr(V_TMP)}")
    e(f"v_and_b32 {vr(vWD)}, 7, v0")
    e(f"v_xor_b32 {vr(vWD)}, {vr(vWD)}, {vr(V_TMP)}")
    e(f"v_lshlrev_b32 {vr(vWD)}, 4, {vr(vWD)}")
    e(f"v_lshrrev_b32 {vr(V_TMP)}, 3, v0")
    e(f"v_lshl_add_u32 {vr(vWD)}, {vr(V_TMP)}, 10, {vr(vWD)}")
    e(f"s_and_b32 {sr(S_A)}, {sr(S_J)}, 7")
    e(f"s_lshl_b32 {sr(S_A)}, {sr(S_A)}, 7")
    e(f"v_add_u32 {vr(vWD)}, {sr(S_A)}, {vr(vWD)}")
    t0, t1, t2, t3 = WF, WF + 1, WF + 2, WF + 3
    tr_lane_parts(e, t0, t1, t2, t3)
    e(f"v_lshl_add_u32 {vr(t3)}, {vr(t3)}, 2, {vr(t0)}")
    e(f"v_lshl_add_u32 {vr(t1)}, {vr(t3)}, 7, {vr(t1)}")
    e(f"v_lshl_add_u32 {vr(t1)}, {vr(t2)}, 5, {vr(t1)}")
    e(f"v_lshrrev_b32 {vr(t0)}, 1, {vr(t0)}")
    e(f"v_lshl_add_u32 {vr(t1)}, {vr(t0)}, 6, {vr(t1)}")
    e(f"v_add_u32 {vr(vTD)}, {sr(S_REG)}, {vr(t1)}")
    e(f"v_xor_b32 {vr(vTD+1)}, 64, {vr(vTD)}")
    e(f"v_mov_b32 {vr(V_GK1)}, {f32(GK1)}")
    e("s_setprio 0")
    e(f"s_mul_i32 {sr(S_UW)}, {sr(S_W)}, 22")
    e(f"s_cmp_eq_u32 {sr(S_W)}, 3")
    e(f"s_cselect_b32 {sr(S_A)}, 1, 0")
    e(f"s_sub_u32 {sr(S_UW)}, {sr(S_UW)}, {sr(S_A)}")
    e(f"s_lshr_b32 {sr(S_A)}, {sr(S_J)}, 3")
    e(f"s_lshl_b32 {sr(S_A)}, {sr(S_A)}, 1")
    e(f"s_lshl_b32 {sr(S_T0)}, {sr(S_C)}, 2")
    e(f"s_add_u32 {sr(S_T0)}, {sr(S_T0)}, {sr(S_A)}")
    e(f"s_mov_b32 {sr(S_K2)}, {f32(GK2)}")
    e(f"s_mov_b32 {sr(S_K2+1)}, {f32(GK2)}")
    e.lds_wait(V_SYNC, V_TMP, C_W + 32, 4, GPRIO)

    def wd_issue(m):
        if m < 22:
            e(f"s_add_u32 {sr(S_B)}, {sr(S_UW)}, {m}")
            s_ = SWD
        else:
            e(f"s_lshl_b32 {sr(S_B)}, {sr(S_W)}, 3")
            e(f"s_add_u32 {sr(S_B)}, {sr(S_B)}, {m-22}")
            s_ = SWO
        e(f"s_lshl_b32 {sr(S_B)}, {sr(S_B)}, 14")
        for i in range(2):
            d = e.dma(s_, vWD, sr(S_SOFF), (S_REG, (m % 12) * 2048 + i * 1024), f"wd{m}")
            e(f"s_add_u32 {sr(S_SOFF)}, {sr(S_B)}, {i*8192}")
            e.dma_go(d)

    for m in range(12):
        wd_issue(m)
    e(f"s_mul_i32 {sr(S_HB)}, {sr(S_T)}, 86")
    e(f"s_add_u32 {sr(S_HB)}, {sr(S_HB)}, {sr(S_U0)}")
    e(f"s_lshl_b32 {sr(S_HB)}, {sr(S_HB)}, 10")
    e(f"s_add_u32 {sr(S_HB)}, {sr(S_HB)}, {WS_H}")
    e("s_setprio 2")
    TG = X0
    for u in range(6):
        z, up = ACC + 16 * u, ACC + 16 * u + 8
        tb = TG + 16 * (u & 1)
        for p in range(4):
            e(f"v_pk_mul_f32 {vr(tb+2*p,2)}, {vr(z+2*p,2)}, {vr(z+2*p,2)}")
        for p in range(4):
            e(f"v_pk_fma_f32 {vr(tb+2*p,2)}, {vr(tb+2*p,2)}, {sr(S_K2,2)}, {vr(V_GK1,2)} op_sel_hi:[1,1,0]")
        for p in range(4):
            e(f"v_pk_mul_f32 {vr(tb+2*p,2)}, {vr(tb+2*p,2)}, {vr(z+2*p,2)}")
        for p in range(8):
            e(f"v_exp_f32 {vr(tb+p)}, {vr(tb+p)}")
        for p in range(4):
            e(f"v_pk_mul_f32 {vr(z+2*p,2)}, {vr(z+2*p,2)}, {vr(up+2*p,2)}")
        for p in range(4):
            e(f"v_pk_fma_f32 {vr(tb+2*p,2)}, {vr(tb+2*p,2)}, {vr(V_GC,2)}, {vr(V_GC,2)} op_sel_hi:[1,0,0]")
        for p in range(8):
            e(f"v_rcp_f32 {vr(tb+p)}, {vr(tb+p)}")
        e("s_nop 0")
        for p in range(4):
            e(f"v_pk_mul_f32 {vr(z+2*p,2)}, {vr(z+2*p,2)}, {vr(tb+2*p,2)}")
        for p in range(4):
            e(f"v_cvt_pk_bf16_f32 {vr(tb+8+p)}, {vr(z+2*p)}, {vr(z+2*p+1)}")
        e(f"s_add_u32 {sr(S_SOFF)}, {sr(S_HB)}, {u*1024}")
        e.vmop(f"buffer_store_dwordx4 {vr(tb+8,4)}, {vr(V_L16)}, {sr(SWS,4)}, {sr(S_SOFF)} offen sc1", "hst")
    vFA = WF
    e(f"v_bfe_u32 {vr(vFA)}, v0, 1, 4")
    e(f"v_lshlrev_b32 {vr(vFA)}, 2, {vr(vFA)}")
    e(f"v_and_b32 {vr(V_TMP)}, 1, v0")
    e(f"v_add_u32 {vr(vFA)}, {vr(vFA)}, {vr(V_TMP)}")
    e(f"v_lshlrev_b32 {vr(vFA)}, 7, {vr(vFA)}")
    vFO = 9
    e(f"v_bfe_u32 {vr(vFO)}, v0, 1, 2")
    e(f"v_lshlrev_b32 {vr(vFO)}, 2, {vr(vFO)}")
    e(f"v_add_u32 {vr(vFO)}, {vr(vFO)}, {vr(V_TMP)}")
    e(f"v_lshlrev_b32 {vr(vFO)}, 7, {vr(vFO)}")
    e("s_setprio 0")
    e(f"s_lshl_b32 {sr(S_A)}, {sr(S_C)}, 4")
    e(f"s_add_u32 {sr(S_A)}, {sr(S_A)}, {sr(S_J)}")
    e(f"s_lshl_b32 {sr(S_A)}, {sr(S_A)}, 2")
    e(f"s_add_u32 {sr(S_A)}, {sr(S_A)}, {sr(S_W)}")
    e(f"s_lshl_b32 {sr(S_A)}, {sr(S_A)}, 7")
    e(f"s_add_u32 {sr(S_A)}, {sr(S_A)}, {WS_FH}")
    e.wait_vm("hst")
    e.flag_store(V_TAG, sr(S_A))
    e.stamp(5, V_STAMP)

    e(f"s_lshl_b32 {sr(S_B)}, {sr(S_C)}, 6")
    e(f"s_and_b32 {sr(S_A)}, {sr(S_T0)}, 3")
    e(f"s_add_u32 {sr(S_B)}, {sr(S_B)}, {sr(S_A)}")
    e(f"s_lshl_b32 {sr(S_EXP)}, {sr(S_B)}, 7")
    e(f"s_add_u32 {sr(S_B)}, {sr(S_EXP)}, {WS_FH}")
    e.gpoll(vFA, WF + 2, GPRIO, sr(S_B))
    e.stamp(6, V_STAMP)
    e(f"s_mul_i32 {sr(S_HB)}, {sr(S_T0)}, 86")
    e(f"s_add_u32 {sr(S_HB)}, {sr(S_HB)}, {sr(S_UW)}")
    e(f"s_lshl_b32 {sr(S_HB)}, {sr(S_HB)}, 10")
    e(f"s_add_u32 {sr(S_HB)}, {sr(S_HB)}, {WS_H}")
    e(f"s_cmp_lt_u32 {sr(S_W)}, 2")
    e(f"s_cselect_b32 {sr(S_H21)}, 21, 20")
    e(f"s_lshl_b32 {sr(S_H21)}, {sr(S_H21)}, 10")
    e(f"s_add_u32 {sr(S_H21)}, {sr(S_H21)}, {sr(S_HB)}")
    HR = 128

    def h_issue(k):
        for tt in range(2):
            if k < 21:
                e(f"s_add_u32 {sr(S_SOFF)}, {sr(S_HB)}, {k*1024 + tt*86*1024}")
            else:
                e(f"s_add_u32 {sr(S_SOFF)}, {sr(S_H21)}, {tt*86*1024}")
            d = HR + 8 * (k % 16) + 4 * tt
            e.vmop(f"buffer_load_dwordx4 {vr(d,4)}, {vr(V_L16)}, {sr(SWS,4)}, {sr(S_SOFF)} offen sc1", f"h{k}")

    def wd_read(m, dst):
        for ct in range(2):
            off = (m % 12) * 2048
            e.dsop(f"ds_read_b64_tr_b16 {vr(dst+4*ct,2)}, {vr(vTD+ct)} offset:{off}")
            e.dsop(f"ds_read_b64_tr_b16 {vr(dst+4*ct+2,2)}, {vr(vTD+ct)} offset:{off+1024}", f"wf{m}")

    for k in range(16):
        h_issue(k)
    wd_read(0, WF)
    A2 = ACC
    for k in range(22):
        if k + 1 < 22:
            e.wait_vm(f"wd{k+1}")
            wd_read(k + 1, WF + 8 * ((k + 1) & 1))
        e.wait_vm(f"h{k}")
        e.wait_ds(f"wf{k}")
        if k == 21:
            e(f"s_cmp_ge_u32 {sr(S_W)}, 2")
            e("s_cbranch_scc1 L_G_skip21")
        for tt in range(2):
            for ct in range(2):
                e(mfma(A2 + 16 * (2 * tt + ct), WF + 8 * (k & 1) + 4 * ct, HR + 8 * (k % 16) + 4 * tt,
                       "0" if k == 0 else None))
        if k == 21:
            e.label("L_G_skip21")
        if k + 12 < 30:
            wd_issue(k + 12)
        if k + 16 < 22:
            h_issue(k + 16)
    e.stamp(7, V_STAMP)

    WOF, OF = 128, 192
    for i in range(8):
        e.wait_vm(f"wd{22+i}")
        if len(e.ds) > 8:
            e.wait_ds(f"wf{22+i-2}")
        wd_read(22 + i, WOF + 8 * i)
    e(f"s_lshl_b32 {sr(S_A)}, {sr(S_W)}, 11")
    e(f"s_add_u32 {sr(S_B)}, {sr(S_EXP)}, {sr(S_A)}")
    e(f"s_add_u32 {sr(S_B)}, {sr(S_B)}, {WS_FO}")
    e(f"s_lshl_b32 {sr(S_HB)}, {sr(S_T0)}, 5")
    e(f"s_lshl_b32 {sr(S_A)}, {sr(S_W)}, 3")
    e(f"s_add_u32 {sr(S_HB)}, {sr(S_HB)}, {sr(S_A)}")
    e(f"s_lshl_b32 {sr(S_HB)}, {sr(S_HB)}, 10")
    e(f"s_add_u32 {sr(S_HB)}, {sr(S_HB)}, {WS_O}")
    e.wait_ds_all()
    e.stamp(8, V_STAMP)
    e.gpoll(vFO, WF + 2, GPRIO, sr(S_B))
    e("s_setprio 1")
    e.stamp(9, V_STAMP)
    for k in range(8):
        for tt in range(2):
            e(f"s_add_u32 {sr(S_SOFF)}, {sr(S_HB)}, {k*1024 + tt*32*1024}")
            e.vmop(f"buffer_load_dwordx4 {vr(OF+8*k+4*tt,4)}, {vr(V_L16)}, {sr(SWS,4)}, {sr(S_SOFF)} offen sc1", f"o{k}")
    vRW, vRR, vOA = 8, 10, 12
    e(f"v_add_u32 {vr(vRW)}, {sr(S_REG)}, {vr(V_L16)}")
    e(f"s_lshl_b32 {sr(S_A)}, {sr(S_W)}, 12")
    e(f"v_add_u32 {vr(vRR)}, {sr(S_A)}, {vr(V_L16)}")
    e(f"v_add_u32 {vr(vRR+1)}, {2*REG}, {vr(vRR)}")
    e(f"v_and_b32 {vr(vOA)}, 31, v0")
    e(f"v_lshlrev_b32 {vr(vOA)}, 10, {vr(vOA)}")
    e(f"v_lshrrev_b32 {vr(V_TMP)}, 5, v0")
    e(f"v_lshl_add_u32 {vr(vOA)}, {vr(V_TMP)}, 4, {vr(vOA)}")
    e(f"s_lshr_b32 {sr(S_A)}, {sr(S_W)}, 1")
    e(f"s_add_u32 {sr(S_A)}, {sr(S_A)}, {sr(S_T0)}")
    e(f"s_lshl_b32 {sr(S_A)}, {sr(S_A)}, 15")
    e(f"s_and_b32 {sr(S_B)}, {sr(S_J)}, 7")
    e(f"s_lshl_b32 {sr(S_B)}, {sr(S_B)}, 7")
    e(f"s_add_u32 {sr(S_A)}, {sr(S_A)}, {sr(S_B)}")
    e(f"s_and_b32 {sr(S_B)}, {sr(S_W)}, 1")
    e(f"s_lshl_b32 {sr(S_B)}, {sr(S_B)}, 6")
    e(f"s_add_u32 {sr(S_KOFF)}, {sr(S_A)}, {sr(S_B)}")
    for k in range(8):
        e.wait_vm(f"o{k}")
        for tt in range(2):
            for ct in range(2):
                e(mfma(A2 + 16 * (2 * tt + ct), WOF + 8 * k + 4 * ct, OF + 8 * k + 4 * tt))
    e("s_nop 8")
    for t in range(4):
        for q in range(4):
            if len(e.ds) >= 12:
                e.wait_ds(f"rw{t-2}")
            e.dsop(f"ds_write_b128 {vr(vRW)}, {vr(A2+16*t+4*q,4)} offset:{t*4096 + q*1024}", f"rw{t}")
    e.wait_ds("rw2")
    e.arrive(V_SYNC, V_ONE, C_R)
    e.lds_wait(V_SYNC, V_TMP, C_R, 4)
    RD = 128
    for p in range(4):
        if p == 3:
            e.wait_ds("rr0")
        for q in range(4):
            e.dsop(f"ds_read_b128 {vr(RD+16*p+4*q,4)}, {vr(vRR+(p>>1))} offset:{(p&1)*REG + q*1024}", f"rr{p}")
    e.wait_ds("rr1")
    for i in range(8):
        e(f"v_pk_add_f32 {vr(RD+2*i,2)}, {vr(RD+2*i,2)}, {vr(RD+16+2*i,2)}")
    e.wait_ds("rr3")
    for i in range(8):
        e(f"v_pk_add_f32 {vr(RD+32+2*i,2)}, {vr(RD+32+2*i,2)}, {vr(RD+48+2*i,2)}")
    for i in range(8):
        e(f"v_pk_add_f32 {vr(RD+2*i,2)}, {vr(RD+2*i,2)}, {vr(RD+32+2*i,2)}")
    PK = RD + 64
    for i in range(8):
        e(f"v_cvt_pk_bf16_f32 {vr(PK+i)}, {vr(RD+2*i)}, {vr(RD+2*i+1)}")
    e("s_nop 1")
    for b in (0, 4):
        e(f"v_permlane32_swap_b32 {vr(PK+b)}, {vr(PK+b+2)}")
        e(f"v_permlane32_swap_b32 {vr(PK+b+1)}, {vr(PK+b+3)}")
    e(f"buffer_store_dwordx4 {vr(PK,4)}, {vr(vOA)}, {sr(SOUT,4)}, {sr(S_KOFF)} offen")
    e(f"buffer_store_dwordx4 {vr(PK+4,4)}, {vr(vOA)}, {sr(SOUT,4)}, {sr(S_KOFF)} offen offset:32")
    e.stamp(10, V_STAMP)
    diag_end(e)
    e("s_endpgm")


def gen_A(e):
    QF = 16
    KB = 24
    VB = 32
    SA, SB = 48, 64
    PA, PB = 80, 88
    OA, OB = 96, 112
    vAK, vAV0, vAV1 = 128, 131, 134
    vG = 137
    vT = 138
    e.label("L_A")
    e.vm = []
    e.ds = []
    e(f"s_cmp_lg_u32 {sr(S_W)}, 0")
    e("s_cbranch_scc1 L_A_nz")
    e(f"v_lshlrev_b32 {vr(vT)}, 2, v0")
    e(f"v_add_u32 {vr(vT)}, {SYNC}, {vr(vT)}")
    e(f"v_mov_b32 {vr(vT+1)}, 0")
    e(f"ds_write_b32 {vr(vT)}, {vr(vT+1)}")
    e(f"s_mov_b32 m0, {GWL}")
    e("s_nop 0")
    e(f"buffer_load_dwordx4 {vr(V_L16)}, {sr(SGW,4)}, 0 offen lds")
    e.label("L_A_nz")
    e(f"v_lshrrev_b32 {vr(vT)}, 2, v0")
    e(f"v_lshlrev_b32 {vr(vT)}, 10, {vr(vT)}")
    e(f"v_and_b32 {vr(V_TMP)}, 3, v0")
    e(f"v_lshl_add_u32 {vr(vT)}, {vr(V_TMP)}, 4, {vr(vT)}")
    e(f"s_lshl_b32 {sr(S_A)}, {sr(S_J)}, 6")
    e(f"v_add_u32 {vr(vT)}, {sr(S_A)}, {vr(vT)}")
    e(f"s_mul_i32 {sr(S_A)}, {sr(S_W)}, 3")
    e(f"s_lshl_b32 {sr(S_B)}, {sr(S_A)}, 14")
    e(f"s_lshl_b32 {sr(S_A)}, {sr(S_A)}, 10")
    for i in range(3):
        e(f"s_add_u32 m0, {sr(S_A)}, {WQA + i*1024}")
        e(f"s_add_u32 {sr(S_SOFF)}, {sr(S_B)}, {i*16384}")
        e(f"buffer_load_dwordx4 {vr(vT)}, {sr(SWQ,4)}, {sr(S_SOFF)} offen lds")
    e(f"v_add_u32 {vr(vAK)}, {R1}, {vr(V_L16)}")
    e(f"v_mov_b32 {vr(vAK+1)}, {vr(V_L16)}")
    e(f"v_add_u32 {vr(vAK+2)}, {2*REG}, {vr(V_L16)}")
    e(f"v_and_b32 {vr(vT)}, 15, v0")
    e(f"v_lshrrev_b32 {vr(V_TMP)}, 5, v0")
    e(f"v_lshl_add_u32 {vr(vT)}, {vr(V_TMP)}, 4, {vr(vT)}")
    e(f"v_lshlrev_b32 {vr(vT)}, 4, {vr(vT)}")
    e(f"v_add_u32 {vr(vAV0+1)}, 1024, {vr(vT)}")
    e(f"v_add_u32 {vr(vAV1+1)}, 1536, {vr(vT)}")
    e("s_mov_b32 exec_lo, 0xffff0000")
    e("s_mov_b32 exec_hi, 0xffff0000")
    e(f"v_mov_b32 {vr(vAV0+1)}, 2048")
    e(f"v_mov_b32 {vr(vAV1+1)}, 2048")
    e("s_mov_b64 exec, -1")
    for b in (vAV0, vAV1):
        e(f"v_add_u32 {vr(b)}, {R1}, {vr(b+1)}")
        e(f"v_add_u32 {vr(b+2)}, {2*REG}, {vr(b+1)}")
    e(f"s_mul_i32 {sr(S_A)}, {sr(S_W)}, {KVT}")
    for gs in range(3):
        e(f"s_add_u32 {sr(S_M0+gs)}, {sr(S_A)}, {R1 + gs*KVG}")
    e(f"s_add_u32 {sr(S_M0+3)}, {sr(S_REG)}, {MISC}")
    vF = vT + 2
    e(f"v_bfe_u32 {vr(vF)}, v0, 1, 4")
    e(f"v_lshlrev_b32 {vr(vF)}, 3, {vr(vF)}")
    e(f"v_and_b32 {vr(V_TMP)}, 1, v0")
    e(f"v_add_u32 {vr(vF)}, {vr(vF)}, {vr(V_TMP)}")
    e(f"v_lshlrev_b32 {vr(vF)}, 7, {vr(vF)}")
    for i in range(16):
        e(f"v_mov_b32 {vr(OA+i)}, 0")
        e(f"v_mov_b32 {vr(OB+i)}, 0")
    for i in range(8):
        e(f"v_mov_b32 {vr(PB+i)}, 0")
        e(f"v_mov_b32 {vr(VB+8+i)}, 0")
    e(f"v_mov_b32 {vr(SB+14)}, 0")
    e(f"v_mov_b32 {vr(SB+15)}, 0")
    ON = vT + 4
    for i in range(4):
        e(f"v_mov_b32 {vr(ON+i)}, 0x3f803f80")
    finish_tag(e)
    e.stamp(1, V_STAMP)
    e("s_waitcnt vmcnt(0)")
    e.arrive(V_SYNC, V_ONE, C_A)
    e(f"s_and_b32 {sr(S_A)}, {sr(S_C)}, 14")
    e(f"s_lshl_b32 {sr(S_A)}, {sr(S_A)}, 2")
    e(f"s_add_u32 {sr(S_A)}, {sr(S_A)}, {sr(S_W)}")
    e(f"s_lshl_b32 {sr(S_KOFF)}, {sr(S_A)}, 11")
    e(f"s_lshl_b32 {sr(S_B)}, {sr(S_W)}, 8")
    e(f"s_add_u32 {sr(S_B)}, {sr(S_B)}, {WS_FKV}")
    e.gpoll(vF, vT, None, sr(S_B))
    e.stamp(2, V_STAMP)
    e.lds_wait(V_SYNC, V_TMP, C_Q, 4)
    e.stamp(3, V_STAMP)
    e("s_setprio 1")

    def kv_dma(gs):
        e(f"s_mov_b32 m0, {sr(S_M0+gs)}")
        e(f"s_add_u32 {sr(S_SOFF)}, {sr(S_KOFF)}, {WS_KV}")
        e(f"buffer_load_dwordx4 {vr(V_L16)}, {sr(SWS,4)}, {sr(S_SOFF)} offen sc1 lds")
        e(f"buffer_load_dwordx4 {vr(V_L16)}, {sr(SWS,4)}, {sr(S_SOFF)} offen offset:1024 sc1 lds")
        e(f"s_add_u32 {sr(S_KOFF)}, {sr(S_KOFF)}, 8192")
        e(f"s_and_b32 {sr(S_KOFF)}, {sr(S_KOFF)}, 0x1ffff")

    for gs in range(3):
        kv_dma(gs)
    e(f"v_add_u32 {vr(vT)}, {sr(S_REG)}, {vr(V_L16)}")
    e.dsop(f"ds_read_b128 {vr(QF,4)}, {vr(vT)} offset:{QOFF}")
    e.dsop(f"ds_read_b128 {vr(QF+4,4)}, {vr(vT)} offset:{QOFF+1024}")
    e(f"v_lshlrev_b32 {vr(vT+1)}, 2, v0")
    e(f"v_add_u32 {vr(vT+1)}, {sr(S_REG)}, {vr(vT+1)}")
    e.dsop(f"ds_read_b32 {vr(vG)}, {vr(vT+1)} offset:{GOFF}")
    e("s_mov_b64 exec, 1")
    for gs in range(4):
        e(f"v_mov_b32 {vr(vT+2)}, {sr(S_M0+gs)}")
        e.dsop(f"ds_write_b128 {vr(vT+2)}, {vr(ON,4)} offset:2048")
    e("s_mov_b64 exec, -1")
    e("s_waitcnt vmcnt(4)")
    e.arrive(V_SYNC, V_ONE, C_KV)
    e.lds_wait(V_SYNC, V_TMP, C_KV, 4)

    def ring(t):
        gs, i = (t >> 2) & 3, t & 3
        if gs < 3:
            return 0, gs * KVG + i * KVT
        return 1 + (i >> 1), (i & 1) * REG + MISC

    def rdK(t):
        b, off = ring(t)
        return f"ds_read_b128 {vr(KB+4*(t&1),4)}, {vr(vAK+b)} offset:{off}"

    def rdV(t, blk):
        b, off = ring(t)
        return f"ds_read_b128 {vr(VB+8*(t&1)+4*blk,4)}, {vr((vAV1 if blk else vAV0)+b)} offset:{off}"

    e(rdK(0))
    e(rdK(1))
    e(rdV(0, 0))
    e(rdV(0, 1))
    e(f"s_mov_b32 {sr(S_EXP)}, 4")
    e(f"s_mov_b32 {sr(S_IT)}, 4")
    e("s_waitcnt lgkmcnt(0)")
    e.ds = []
    e(mfma(SA, KB, QF, "0"))
    e.stamp(4, V_STAMP)
    e("s_nop 11")
    e(".p2align 6")
    e.label("L_A_loop")
    for t in range(16):
        p, gi = t & 3, t >> 2
        S = lambda i: (SA + i if i < 16 else SB + i - 16)
        P = lambda i: (PA + i if i < 8 else PB + i - 8)
        V = [f"v_exp_f32 {vr(S(0))}, {vr(S(0))}", f"v_cvt_pk_bf16_f32 {vr(P(15))}, {vr(S(30))}, {vr(S(31))}"]
        for i in range(15):
            V += [f"v_exp_f32 {vr(S(2*i+1))}, {vr(S(2*i+1))}", f"v_exp_f32 {vr(S(2*i+2))}, {vr(S(2*i+2))}",
                  f"v_cvt_pk_bf16_f32 {vr(P(i))}, {vr(S(2*i))}, {vr(S(2*i+1))}"]
        V += [f"v_exp_f32 {vr(S(31))}, {vr(S(31))}"]
        assert len(V) == 48
        kc, kn = KB + 4 * (t & 1), KB + 4 * ((t + 1) & 1)
        vc, vp = VB + 8 * (t & 1), VB + 8 * ((t + 1) & 1)
        M = {1: mfma(SB, kc, QF + 4, "0"), 9: mfma(OB, vp, PB), 17: mfma(OB, vp + 4, PB + 4),
             25: mfma(SA, kn, QF, "0"), 33: mfma(OA, vc, PA), 41: mfma(OA, vc + 4, PA + 4)}
        slot = {1: [], 9: [], 17: ["s_waitcnt lgkmcnt(0)"], 25: [rdK(t + 2)], 33: [rdV(t + 1, 0)], 41: [rdV(t + 1, 1)]}
        extra = {}
        nslot = (gi + 1) & 3
        if p == 0:
            slot[1] = ["s_waitcnt vmcnt(2)"]
            slot[9] = [f"ds_add_u32 {vr(V_SYNC)}, {vr(V_ONE)} offset:{C_KV + 4*nslot}"]
            slot[17] = ["s_waitcnt lgkmcnt(1)"]
        if p == 1:
            slot[1] = [f"s_add_u32 {sr(S_SOFF)}, {sr(S_KOFF)}, {WS_KV}"]
            slot[9] = [f"s_add_u32 {sr(S_KOFF)}, {sr(S_KOFF)}, 8192"]
        if p == 2:
            slot[1] = [f"ds_read_b32 {vr(V_TMP)}, {vr(V_SYNC)} offset:{C_KV + 4*nslot}"]
            slot[9] = [f"s_and_b32 {sr(S_KOFF)}, {sr(S_KOFF)}, 0x1ffff"]
            if gi == 3:
                slot[9].append(f"s_add_u32 {sr(S_EXP)}, {sr(S_EXP)}, 4")
            extra[20] = "check"
        if p == 3:
            slot[1] = [f"s_mov_b32 m0, {sr(S_M0 + ((gi + 3) & 3))}"]
            slot[9] = [f"buffer_load_dwordx4 {vr(V_L16)}, {sr(SWS,4)}, {sr(S_SOFF)} offen sc1 lds",
                       f"buffer_load_dwordx4 {vr(V_L16)}, {sr(SWS,4)}, {sr(S_SOFF)} offen offset:1024 sc1 lds"]
        for i, ins in enumerate(V):
            e(ins)
            if i in M:
                e(M[i])
                for x in slot[i]:
                    e(x)
            if i in extra:
                e.poll_check(V_SYNC, V_TMP, C_KV + 4 * nslot, sr(S_EXP))
        if t == 15:
            e(f"s_sub_u32 {sr(S_IT)}, {sr(S_IT)}, 1")
            e(f"s_cmp_lg_u32 {sr(S_IT)}, 0")
            e("s_cbranch_scc1 L_A_loop")
    e("s_nop 0")
    e(f"v_cvt_pk_bf16_f32 {vr(PB+7)}, {vr(SB+14)}, {vr(SB+15)}")
    e("s_nop 1")
    e(mfma(OB, VB + 8, PB))
    e(mfma(OB, VB + 12, PB + 4))
    e.stamp(5, V_STAMP)
    e(f"s_lshl_b32 {sr(S_HB)}, {sr(S_T)}, 5")
    e(f"s_lshl_b32 {sr(S_A)}, {sr(S_J)}, 1")
    e(f"s_add_u32 {sr(S_HB)}, {sr(S_HB)}, {sr(S_A)}")
    e(f"s_lshl_b32 {sr(S_HB)}, {sr(S_HB)}, 10")
    e(f"s_add_u32 {sr(S_HB)}, {sr(S_HB)}, {WS_O}")
    e(f"s_mov_b32 {sr(S_A)}, {f32(2.0**-40)}")
    e(f"s_mov_b32 {sr(S_B)}, {f32(2.0**40)}")
    e(f"s_mov_b32 {sr(S_EXP)}, {f32(2.0**126)}")
    e("s_nop 3")
    e(f"v_add_f32 {vr(vT)}, |{vr(OA)}|, |{vr(OA+1)}|")
    e(f"v_add_f32 {vr(vT+1)}, |{vr(OB)}|, |{vr(OB+1)}|")
    for i in range(2, 8):
        e(f"v_add_f32 {vr(vT)}, |{vr(OA+i)}|, {vr(vT)}")
        e(f"v_add_f32 {vr(vT+1)}, |{vr(OB+i)}|, {vr(vT+1)}")
    e(f"v_add_f32 {vr(vT)}, {vr(vT)}, {vr(vT+1)}")
    e(f"v_cmp_nge_f32 vcc, {sr(S_EXP)}, {vr(vT)}")
    e("s_mov_b64 s[34:35], vcc")
    for o_ in (OA, OB):
        e(f"v_cmp_nle_f32 vcc, {sr(S_A)}, {vr(o_+8)}")
        e("s_or_b64 s[34:35], s[34:35], vcc")
        e(f"v_cmp_nge_f32 vcc, {sr(S_B)}, {vr(o_+8)}")
        e("s_or_b64 s[34:35], s[34:35], vcc")
    e("s_cmp_lg_u64 s[34:35], 0")
    e("s_cbranch_scc1 L_A_slow")
    e.label("L_A_fin")
    e(f"v_rcp_f32 {vr(vT)}, {vr(OA+8)}")
    e(f"v_rcp_f32 {vr(vT+1)}, {vr(OB+8)}")
    e("s_nop 0")
    e(f"v_mul_f32 {vr(vT)}, {vr(vT)}, {vr(vG)}")
    e(f"v_mul_f32 {vr(vT+1)}, {vr(vT+1)}, {vr(vG)}")
    for o_, t_, p_ in ((OA, vT, PA), (OB, vT + 1, PB)):
        for i in range(8):
            e(f"v_mul_f32 {vr(o_+i)}, {vr(o_+i)}, {vr(t_)}")
        for i in range(4):
            e(f"v_cvt_pk_bf16_f32 {vr(p_+i)}, {vr(o_+2*i)}, {vr(o_+2*i+1)}")
    e(f"buffer_store_dwordx4 {vr(PA,4)}, {vr(V_L16)}, {sr(SWS,4)}, {sr(S_HB)} offen sc1")
    e(f"buffer_store_dwordx4 {vr(PB,4)}, {vr(V_L16)}, {sr(SWS,4)}, {sr(S_HB)} offen offset:1024 sc1")
    e(f"s_lshl_b32 {sr(S_A)}, {sr(S_C)}, 4")
    e(f"s_add_u32 {sr(S_A)}, {sr(S_A)}, {sr(S_J)}")
    e(f"s_lshl_b32 {sr(S_A)}, {sr(S_A)}, 2")
    e(f"s_add_u32 {sr(S_A)}, {sr(S_A)}, {sr(S_W)}")
    e(f"s_lshl_b32 {sr(S_A)}, {sr(S_A)}, 7")
    e(f"s_add_u32 {sr(S_A)}, {sr(S_A)}, {WS_FO}")
    e("s_waitcnt vmcnt(0)")
    e.vm = []
    e.flag_store(V_TAG, sr(S_A))
    e.stamp(6, V_STAMP)
    e(f"s_or_b32 {sr(S_A)}, s2, {sr(S_W)}")
    e(f"s_cmp_lg_u32 {sr(S_A)}, 0")
    e("s_cbranch_scc1 L_A_end")
    e(f"v_lshlrev_b32 {vr(vT+2)}, 9, v0")
    for i in range(4):
        e(f"s_mov_b32 {sr(S_B)}, {WS_FH + i*64*512}")
        e.gpoll(vT + 2, vT, None, sr(S_B))
    e(f"s_mov_b32 {sr(S_A)}, {WS_EPOCH}")
    e.flag_store(V_TAG, sr(S_A))
    e.label("L_A_end")
    diag_end(e)
    e("s_endpgm")

    e.label("L_A_slow")
    CA, CB = 144, 160
    KT = 176
    VT = 180
    vMA, vMB = 188, 189
    vVA = 190
    e(f"v_lshlrev_b32 {vr(vT+2)}, 7, v0")
    for i in range(2):
        e(f"s_mov_b32 {sr(S_B)}, {WS_FKV + i*64*128}")
        e.gpoll(vT + 2, vT, None, sr(S_B))
    e(f"v_mov_b32 {vr(vMA)}, 0xff800000")
    e(f"v_mov_b32 {vr(vMB)}, 0xff800000")
    e(f"s_mov_b32 {sr(S_SOFF)}, {WS_KV}")
    e.label("L_A_slow1")
    e(f"buffer_load_dwordx4 {vr(KT,4)}, {vr(V_L16)}, {sr(SWS,4)}, {sr(S_SOFF)} offen sc1")
    e("s_waitcnt vmcnt(0)")
    e(mfma(SA, KT, QF, "0"))
    e(mfma(SB, KT, QF + 4, "0"))
    e("s_nop 11")
    for s_, m_ in ((SA, vMA), (SB, vMB)):
        for i in range(8):
            e(f"v_max3_f32 {vr(m_)}, {vr(s_+2*i)}, {vr(s_+2*i+1)}, {vr(m_)}")
    e(f"s_add_u32 {sr(S_SOFF)}, {sr(S_SOFF)}, 2048")
    e(f"s_cmp_lt_u32 {sr(S_SOFF)}, {WS_KV + 64*2048}")
    e("s_cbranch_scc1 L_A_slow1")
    for m_, c_ in ((vMA, CA), (vMB, CB)):
        e(f"v_mov_b32 {vr(vT)}, {vr(m_)}")
        e("s_nop 1")
        e(f"v_permlane32_swap_b32 {vr(m_)}, {vr(vT)}")
        e(f"v_max_f32 {vr(m_)}, {vr(m_)}, {vr(vT)}")
        for i in range(16):
            e(f"v_sub_f32 {vr(c_+i)}, 0, {vr(m_)}")
    for i in range(16):
        e(f"v_mov_b32 {vr(OA+i)}, 0")
        e(f"v_mov_b32 {vr(OB+i)}, 0")
    for i in range(8):
        e(f"v_mov_b32 {vr(VT+i)}, 0x3f803f80")
    e(f"v_and_b32 {vr(vVA)}, 15, v0")
    e(f"v_lshrrev_b32 {vr(vT)}, 5, v0")
    e(f"v_lshl_add_u32 {vr(vVA)}, {vr(vT)}, 4, {vr(vVA)}")
    e(f"v_lshlrev_b32 {vr(vVA)}, 4, {vr(vVA)}")
    e(f"s_mov_b32 {sr(S_SOFF)}, {WS_KV}")
    e.label("L_A_slow2")
    e(f"buffer_load_dwordx4 {vr(KT,4)}, {vr(V_L16)}, {sr(SWS,4)}, {sr(S_SOFF)} offen sc1")
    e("s_mov_b32 exec_lo, 0x0000ffff")
    e("s_mov_b32 exec_hi, 0x0000ffff")
    e(f"buffer_load_dwordx4 {vr(VT,4)}, {vr(vVA)}, {sr(SWS,4)}, {sr(S_SOFF)} offen offset:1024 sc1")
    e(f"buffer_load_dwordx4 {vr(VT+4,4)}, {vr(vVA)}, {sr(SWS,4)}, {sr(S_SOFF)} offen offset:1536 sc1")
    e("s_mov_b64 exec, -1")
    e("s_waitcnt vmcnt(0)")
    e(mfma(SA, KT, QF, vr(CA, 16)))
    e(mfma(SB, KT, QF + 4, vr(CB, 16)))
    e("s_nop 11")
    for s_ in (SA, SB):
        for i in range(16):
            e(f"v_exp_f32 {vr(s_+i)}, {vr(s_+i)}")
    e("s_nop 0")
    for s_, p_ in ((SA, PA), (SB, PB)):
        for i in range(8):
            e(f"v_cvt_pk_bf16_f32 {vr(p_+i)}, {vr(s_+2*i)}, {vr(s_+2*i+1)}")
    e("s_nop 1")
    e(mfma(OA, VT, PA))
    e(mfma(OA, VT + 4, PA + 4))
    e(mfma(OB, VT, PB))
    e(mfma(OB, VT + 4, PB + 4))
    e(f"s_add_u32 {sr(S_SOFF)}, {sr(S_SOFF)}, 2048")
    e(f"s_cmp_lt_u32 {sr(S_SOFF)}, {WS_KV + 64*2048}")
    e("s_cbranch_scc1 L_A_slow2")
    e("s_nop 11")
    e("s_branch L_A_fin")


def main():
    e = K()
    gen_entry(e)
    gen_G(e)
    gen_A(e)
    for c in e.cold:
        e.lines.append(c)
    e.label("L_exit")
    e("s_endpgm")
    probs = check_text(e.lines)
    for p in probs:
        print("HAZARD", p, file=sys.stderr)
    ref = open("cdna_kernels/" + NAME + ".s.ref").read().split("\n")
    hdr = [l for l in ref if l.startswith(";") and "@launch" not in l and not l.startswith("; Override") and not l.startswith("; grid=")]
    out = "\n".join(hdr) + "\n"
    out += f"; @launch grid=(256,1,1) block=(512,1,1) lds={LDS_BYTES}\n"
    out += '.amdgcn_target "amdgcn-amd-amdhsa--gfx950"\n.text\n'
    out += f".globl {NAME}_kernel\n.p2align 8\n.type {NAME}_kernel,@function\n{NAME}_kernel:\n"
    out += e.text()
    out += f""".section .rodata,"a"
.p2align 6
.amdhsa_kernel {NAME}_kernel
  .amdhsa_next_free_vgpr 256
  .amdhsa_next_free_sgpr 102
  .amdhsa_accum_offset 256
  .amdhsa_group_segment_fixed_size 0
  .amdhsa_kernarg_size 104
  .amdhsa_user_sgpr_count 2
  .amdhsa_user_sgpr_kernarg_segment_ptr 1
  .amdhsa_system_sgpr_workgroup_id_x 1
.end_amdhsa_kernel
"""
    args = [a for a in sys.argv[1:] if not a.startswith("--")]
    path = args[0] if args else "cdna_kernels/" + NAME + ".s"
    open(path, "w").write(out)
    print("wrote", path, "instructions:", sum(1 for l in e.lines if not (l.endswith(":") or l[0] in ";.")),
          "hazards:", len(probs))


main()
```

```python
import sys, struct, math
from asmlib import Em, vr, sr, check_text

NAME = "gated_mix__grouped_kv_mqa__glu_gated_geglu__prompt"
DIAG = "--diag" in sys.argv


def f32(x):
    return "0x%08x" % struct.unpack("<I", struct.pack("<f", x))[0]


WS_EPOCH = 0
WS_FKV = 0x1000
WS_FH = 0x8000
WS_FO = 0x28000
WS_KV = 0x50000
WS_O = 0x100000
WS_H = 0x300000
WS_END = 0x860000
WS_DIAG = 0x900000
WS_SIZE = 0xA00000 if DIAG else WS_END

REG = 32768
SLOT = 6176
UPOFF = 3104
MISC = 24704
QOFF = 29824
GOFF = 31872
R1 = 131072
WKV = R1
WQA = R1 + 16384
GWL = R1 + 28672
SYNC = R1 + 29696
LDS_BYTES = 163840
C_A, C_B, C_Q, C_R = 0, 4, 8, 12
C_W = 16
C_KV = 64
C_X = 80
C_AE = 96
KVT = 2064
KVG = 4 * KVT


def slaboff(q):
    return 4096 * ((q + 6) & 7)


S_WAVE, S_C, S_J, S_W, S_T = 3, 4, 5, 6, 7
SX, SWQ, SKVW, SWO, SWG, SWU, SWD, SGW, SOUT, SWS = 36, 40, 44, 48, 52, 56, 60, 64, 68, 72
S_TAG = 76
S_REG, S_A, S_B, S_SOFF, S_U0, S_CNT, S_RD, S_EXP, S_KOFF, S_IT = 78, 79, 80, 81, 82, 83, 84, 85, 86, 87
S_HB, S_T0, S_UW, S_H21 = 88, 89, 90, 91
S_K2 = 92
S_M0 = 94
S_ST = 98
S_ROLE = 100
S_ROT = 101
S_WI, S_HI, S_UE = 94, 95, 96

LOG2E = 1.4426950408889634
QSCALE = 0.25 * LOG2E
GK1 = -2.0 * math.sqrt(2.0 / math.pi) * LOG2E
GK2 = GK1 * 0.044715


class K(Em):
    def __init__(self):
        super().__init__()
        self.ds = []
        self.cold = []

    def dsop(self, instr, label=None):
        self(instr)
        self.ds.append(label)
        assert len(self.ds) <= 15, "too many outstanding ds ops"

    def wait_ds(self, label):
        idx = [i for i, l in enumerate(self.ds) if l == label]
        if not idx:
            return
        n = len(self.ds) - 1 - idx[-1]
        self(f"s_waitcnt lgkmcnt({n})")
        self.ds = self.ds[idx[-1] + 1:]

    def wait_ds_all(self):
        self("s_waitcnt lgkmcnt(0)")
        self.ds = []

    def dma(self, srd, voff, soff, ldsaddr, label=None, flags="", imm=0, setm0=True):
        if setm0:
            if isinstance(ldsaddr, tuple):
                self(f"s_add_u32 m0, {sr(ldsaddr[0])}, {ldsaddr[1]}")
            else:
                self(f"s_mov_b32 m0, {ldsaddr}")
        o = f" offset:{imm}" if imm else ""
        return (srd, voff, soff, label, flags, o)

    def dma_go(self, d):
        srd, voff, soff, label, flags, o = d
        self.vmop(f"buffer_load_dwordx4 {vr(voff)}, {sr(srd,4)}, {soff} offen{o} {flags} lds", label)

    def stamp(self, idx, vreg):
        if not DIAG:
            return
        self(f"s_memrealtime {sr(S_ST,2)}")
        self(f"s_memtime s[34:35]")
        self("s_waitcnt lgkmcnt(0)")
        self.ds = []
        self(f"v_writelane_b32 {vr(vreg)}, {sr(S_ST)}, {idx}")
        self(f"v_writelane_b32 {vr(vreg)}, s34, {32+idx}")

    def arrive(self, vsync, vone, off, label=None):
        self.dsop(f"ds_add_u32 {vr(vsync)}, {vr(vone)} offset:{off}", label)

    def poll_issue(self, vsync, vtmp, off, label):
        self.dsop(f"ds_read_b32 {vr(vtmp)}, {vr(vsync)} offset:{off}", label)

    def poll_check(self, vsync, vtmp, off, expected, prio=None):
        ok = self.newlabel("ok")
        spin = self.newlabel("spin")
        if prio:
            self(f"s_setprio {prio[0]}")
        self(f"v_readfirstlane_b32 {sr(S_RD)}, {vr(vtmp)}")
        if prio:
            self(f"s_setprio {prio[1]}")
        self(f"s_cmp_ge_u32 {sr(S_RD)}, {expected}")
        self(f"s_cbranch_scc0 {spin}")
        self.label(ok)
        c = [f"{spin}:", "s_sleep 1", f"ds_read_b32 {vr(vtmp)}, {vr(vsync)} offset:{off}", "s_waitcnt lgkmcnt(0)"]
        if prio:
            c.append(f"s_setprio {prio[0]}")
        c.append(f"v_readfirstlane_b32 {sr(S_RD)}, {vr(vtmp)}")
        if prio:
            c.append(f"s_setprio {prio[1]}")
        c += [f"s_cmp_ge_u32 {sr(S_RD)}, {expected}", f"s_cbranch_scc1 {ok}",
              f"s_sub_u32 {sr(S_CNT)}, {sr(S_CNT)}, 1", f"s_cbranch_scc0 {spin}", f"s_mov_b32 {sr(S_CNT)}, 0",
              f"s_branch {ok}"]
        self.cold += c

    def lds_wait(self, vsync, vtmp, off, expected, prio=None):
        self.poll_issue(vsync, vtmp, off, "poll")
        self.wait_ds("poll")
        self.poll_check(vsync, vtmp, off, expected, prio)

    def gpoll(self, vaddr, vtmp, prio=None, soff="0"):
        top = self.newlabel("gp")
        done = self.newlabel("gpd")
        self.label(top)
        self(f"buffer_load_dwordx2 {vr(vtmp,2)}, {vr(vaddr)}, {sr(SWS,4)}, {soff} offen sc1")
        self("s_waitcnt vmcnt(0)")
        self.vm = []
        if prio:
            self(f"s_setprio {prio[0]}")
        self(f"v_cmp_ne_u64 vcc, {sr(S_TAG,2)}, {vr(vtmp,2)}")
        if prio:
            self(f"s_setprio {prio[1]}")
        self(f"s_cbranch_vccz {done}")
        self(f"s_sub_u32 {sr(S_CNT)}, {sr(S_CNT)}, 1")
        self(f"s_cbranch_scc0 {top}")
        self(f"s_mov_b32 {sr(S_CNT)}, 0")
        self.label(done)

    def flag_store(self, vtag, soff):
        self("s_mov_b64 exec, 1")
        self.vmop(f"buffer_store_dwordx2 {vr(vtag,2)}, off, {sr(SWS,4)}, {soff} sc1", "flag")
        self("s_mov_b64 exec, -1")


def mfma(d, a, b, c=None):
    cc = vr(d, 16) if c is None else c
    return f"v_mfma_f32_32x32x16_bf16 {vr(d,16)}, {vr(a,4)}, {vr(b,4)}, {cc}"


def srd(e, dst, ptr, size):
    e(f"s_mov_b32 {sr(dst)}, {sr(ptr)}")
    e(f"s_mov_b32 {sr(dst+1)}, {sr(ptr+1)}")
    e(f"s_mov_b32 {sr(dst+2)}, {size}")
    e(f"s_mov_b32 {sr(dst+3)}, 0x20000")


V_LANE, V_SYNC, V_ONE, V_TMP, V_L16, V_STAMP = 0, 1, 2, 3, 4, 15
V_TAG = 6
V_W1S = 10
V_SX = 5


def gen_entry(e):
    e("s_cmp_ge_u32 s2, 256")
    e("s_cbranch_scc1 L_exit")
    e("s_load_dwordx16 s[8:23], s[0:1], 0")
    e("s_load_dwordx8 s[24:31], s[0:1], 64")
    e("s_load_dwordx2 s[32:33], s[0:1], 96")
    e("v_lshrrev_b32 v1, 6, v0")
    e("v_and_b32 v0, 63, v0")
    e(f"v_readfirstlane_b32 {sr(S_WAVE)}, v1")
    if DIAG:
        e(f"v_mov_b32 {vr(V_STAMP)}, 0")
    e(f"s_and_b32 {sr(S_J)}, s2, 3")
    e(f"s_lshl_b32 {sr(S_J)}, {sr(S_J)}, 2")
    e(f"s_bfe_u32 {sr(S_A)}, s2, 0x20003")
    e(f"s_add_u32 {sr(S_J)}, {sr(S_J)}, {sr(S_A)}")
    e(f"s_bfe_u32 {sr(S_C)}, s2, 0x10002")
    e(f"s_lshl_b32 {sr(S_C)}, {sr(S_C)}, 3")
    e(f"s_lshr_b32 {sr(S_A)}, s2, 5")
    e(f"s_add_u32 {sr(S_C)}, {sr(S_C)}, {sr(S_A)}")
    e(f"s_and_b32 {sr(S_W)}, {sr(S_WAVE)}, 3")
    e(f"s_and_b32 {sr(S_ROT)}, {sr(S_J)}, 3")
    e(f"s_lshl_b32 {sr(S_ROT)}, {sr(S_ROT)}, 1")
    e(f"s_add_u32 {sr(S_ROT)}, {sr(S_ROT)}, {sr(S_C)}")
    e(f"s_and_b32 {sr(S_ROT)}, {sr(S_ROT)}, 7")
    e(f"s_lshl_b32 {sr(S_T)}, {sr(S_C)}, 2")
    e(f"s_add_u32 {sr(S_T)}, {sr(S_T)}, {sr(S_W)}")
    e(f"s_lshl_b32 {sr(S_REG)}, {sr(S_W)}, 15")
    e(f"s_mov_b32 {sr(S_CNT)}, 0x200000")
    e(f"v_lshlrev_b32 {vr(V_L16)}, 4, v0")
    e(f"v_lshlrev_b32 {vr(V_TMP)}, 2, v0")
    e(f"v_add_u32 {vr(V_SYNC)}, {SYNC + 128}, {vr(V_TMP)}")
    e(f"v_mov_b32 {vr(V_ONE)}, {SYNC}")
    e("s_mov_b64 exec, 1")
    e(f"v_mov_b32 {vr(V_SYNC)}, {vr(V_ONE)}")
    e("s_mov_b64 exec, -1")
    e(f"v_mov_b32 {vr(V_ONE)}, 1")
    e(f"s_lshl_b32 {sr(S_A)}, {sr(S_W)}, 2")
    e(f"s_add_u32 {sr(S_A)}, {sr(S_A)}, {C_X}")
    e(f"v_add_u32 {vr(V_SX)}, {sr(S_A)}, {vr(V_SYNC)}")
    e(f"s_cmp_lg_u32 {sr(S_WAVE)}, 0")
    e("s_cbranch_scc1 L_nz")
    e(f"v_add_u32 {vr(V_TMP)}, {SYNC}, {vr(V_TMP)}")
    e(f"v_mov_b32 {vr(V_TAG)}, 0")
    e(f"ds_write_b32 {vr(V_TMP)}, {vr(V_TAG)}")
    e.label("L_nz")
    e("s_waitcnt lgkmcnt(0)")
    e.stamp(0, V_STAMP)
    e(f"s_load_dwordx2 {sr(S_TAG,2)}, s[32:33], {WS_EPOCH}")
    srd(e, SX, 8, 2048 * 1024)
    srd(e, SWQ, 10, 512 * 1024)
    e(f"s_and_b32 {sr(S_A)}, {sr(S_J)}, 1")
    e(f"s_cmp_eq_u32 {sr(S_A)}, 0")
    e("s_cselect_b32 s34, s12, s14")
    e("s_cselect_b32 s35, s13, s15")
    srd(e, SKVW, 34, 512 * 32)
    srd(e, SWO, 16, 512 * 1024)
    srd(e, SWG, 20, 512 * 2752)
    srd(e, SWU, 22, 512 * 2752)
    srd(e, SWD, 24, 1376 * 1024)
    srd(e, SGW, 26, 1024)
    srd(e, SOUT, 28, 2048 * 1024)
    srd(e, SWS, 32, WS_SIZE)
    e(f"s_cmp_lt_u32 {sr(S_WAVE)}, 4")
    e("s_cbranch_scc1 L_A")


def finish_tag(e):
    e(f"s_add_u32 {sr(S_TAG)}, {sr(S_TAG)}, 1")
    e(f"s_addc_u32 {sr(S_TAG+1)}, {sr(S_TAG+1)}, 0")
    e(f"v_mov_b32 {vr(V_TAG)}, {sr(S_TAG)}")
    e(f"v_mov_b32 {vr(V_TAG+1)}, {sr(S_TAG+1)}")


def u0_calc(e):
    e(f"s_mul_i32 {sr(S_A)}, {sr(S_J)}, 43")
    e(f"s_lshr_b32 {sr(S_A)}, {sr(S_A)}, 7")
    e(f"s_mul_i32 {sr(S_B)}, {sr(S_A)}, 3")
    e(f"s_sub_u32 {sr(S_B)}, {sr(S_J)}, {sr(S_B)}")
    e(f"s_mul_i32 {sr(S_B)}, {sr(S_B)}, 6")
    e(f"s_lshl_b32 {sr(S_U0)}, {sr(S_A)}, 4")
    e(f"s_add_u32 {sr(S_U0)}, {sr(S_U0)}, {sr(S_B)}")


def w1s_calc(e, t0, t1):
    e(f"s_lshl_b32 {sr(S_A)}, {sr(S_U0)}, 5")
    for i in range(3):
        e(f"v_add_u32 {vr(V_TMP)}, {64*i}, v0")
        e(f"v_mul_u32_u24 {vr(t0)}, 43691, {vr(V_TMP)}")
        e(f"v_lshrrev_b32 {vr(t0)}, 19, {vr(t0)}")
        e(f"v_mul_u32_u24 {vr(t1)}, 12, {vr(t0)}")
        e(f"v_sub_u32 {vr(t1)}, {vr(V_TMP)}, {vr(t1)}")
        e(f"v_mul_u32_u24 {vr(t0)}, 2752, {vr(t0)}")
        e(f"v_lshl_add_u32 {vr(t0)}, {vr(t1)}, 4, {vr(t0)}")
        e(f"v_add_u32 {vr(V_W1S+i)}, {sr(S_A)}, {vr(t0)}")


def diag_end(e):
    if not DIAG:
        return
    e(f"s_lshl_b32 {sr(S_A)}, s2, 3")
    e(f"s_add_u32 {sr(S_A)}, {sr(S_A)}, {sr(S_WAVE)}")
    e(f"s_lshl_b32 {sr(S_A)}, {sr(S_A)}, 8")
    e(f"s_add_u32 {sr(S_A)}, {sr(S_A)}, {WS_DIAG}")
    e(f"v_lshlrev_b32 {vr(V_TMP)}, 2, {vr(V_LANE)}")
    e(f"buffer_store_dword {vr(V_STAMP)}, {vr(V_TMP)}, {sr(SWS,4)}, {sr(S_A)} offen")
    e("s_waitcnt vmcnt(0)")


X0 = 128
ACC = 32
WF = 16
V_TR = 8
V_GC = 14
V_GK1 = 12
GPRIO = (2, 0)


def tr_lane_parts(e, vr_r, vr_c8, vr_g, vr_h):
    e(f"v_bfe_u32 {vr(vr_r)}, v0, 2, 2")
    e(f"v_and_b32 {vr(vr_c8)}, 3, v0")
    e(f"v_lshlrev_b32 {vr(vr_c8)}, 3, {vr(vr_c8)}")
    e(f"v_bfe_u32 {vr(vr_g)}, v0, 4, 1")
    e(f"v_lshrrev_b32 {vr(vr_h)}, 5, v0")


def w1_issue(e, g):
    e(f"s_add_u32 {sr(S_SOFF)}, {sr(S_ROT)}, {g}")
    e(f"s_and_b32 {sr(S_SOFF)}, {sr(S_SOFF)}, 7")
    e(f"s_lshl_b32 {sr(S_SOFF)}, {sr(S_SOFF)}, 2")
    e(f"s_add_u32 {sr(S_SOFF)}, {sr(S_SOFF)}, {sr(S_W)}")
    e(f"s_mul_i32 {sr(S_SOFF)}, {sr(S_SOFF)}, {16*2752}")
    base = (g & 3) * SLOT
    for m, s in ((0, SWG), (1, SWU)):
        for i in range(3):
            d = e.dma(s, V_W1S + i, sr(S_SOFF), (S_REG, base + m * UPOFF + i * 1024), f"w1_{g}")
            e("s_nop 0")
            e.dma_go(d)


def gen_G(e):
    T = ACC
    vXE, vXO = T + 0, T + 1
    vXR = T + 2
    vWQS = T + 6
    vTKV = T + 7
    vTQ = T + 8
    vGWA = T + 11
    vr_, vc8, vg, vh = T + 12, T + 13, T + 14, T + 15
    QA = T + 16
    KVA = T + 32
    FR = T + 48
    vZ = WF

    e(f"s_lshr_b32 {sr(S_A)}, {sr(S_J)}, 2")
    e(f"s_and_b32 {sr(S_B)}, {sr(S_J)}, 3")
    e(f"s_mov_b32 {sr(S_ROLE)}, 2")
    e(f"s_cmp_lg_u32 {sr(S_A)}, {sr(S_W)}")
    e("s_cbranch_scc1 L_G_role")
    e(f"s_cmp_ge_u32 {sr(S_B)}, 2")
    e("s_cbranch_scc1 L_G_role")
    e(f"s_mov_b32 {sr(S_ROLE)}, 1")
    e(f"s_cmp_eq_u32 {sr(S_B)}, 1")
    e("s_cbranch_scc1 L_G_role")
    e(f"s_mov_b32 {sr(S_ROLE)}, 0")
    e.label("L_G_role")
    e(f"v_lshrrev_b32 {vr(vXE)}, 3, v0")
    e(f"v_lshlrev_b32 {vr(vXE)}, 10, {vr(vXE)}")
    e(f"v_and_b32 {vr(vXO)}, 7, v0")
    e(f"v_lshrrev_b32 {vr(V_TMP)}, 4, v0")
    e(f"v_xor_b32 {vr(vXO)}, {vr(vXO)}, {vr(V_TMP)}")
    e(f"v_lshlrev_b32 {vr(vXO)}, 4, {vr(vXO)}")
    e(f"v_add_u32 {vr(vXE)}, {vr(vXE)}, {vr(vXO)}")
    e(f"v_xor_b32 {vr(vXO)}, 64, {vr(vXE)}")
    e(f"s_lshl_b32 {sr(S_B)}, {sr(S_T)}, 15")

    def x_issue(kvw=False):
        for q in range(8):
            e(f"s_add_u32 {sr(S_A)}, {sr(S_ROT)}, {q}")
            e(f"s_and_b32 {sr(S_A)}, {sr(S_A)}, 7")
            if kvw:
                e(f"s_mov_b32 m0, {WKV + q*2048}")
                e(f"s_lshl_b32 {sr(S_SOFF)}, {sr(S_A)}, 11")
                e.vmop(f"buffer_load_dwordx4 {vr(V_L16)}, {sr(SKVW,4)}, {sr(S_SOFF)} offen lds", f"x{q}")
                e.vmop(f"buffer_load_dwordx4 {vr(V_L16)}, {sr(SKVW,4)}, {sr(S_SOFF)} offen offset:1024 lds", f"x{q}")
            e(f"s_lshl_b32 {sr(S_A)}, {sr(S_A)}, 7")
            e(f"s_add_u32 {sr(S_A)}, {sr(S_A)}, {sr(S_B)}")
            for i in range(4):
                d = e.dma(SX, vXO if (i & 1) else vXE, sr(S_SOFF), (S_REG, slaboff(q) + i * 1024), f"x{q}")
                e(f"s_add_u32 {sr(S_SOFF)}, {sr(S_A)}, {i*8192}")
                e.dma_go(d)

    e(f"s_cmp_eq_u32 {sr(S_ROLE)}, 2")
    e("s_cbranch_scc1 L_G_nokvw")
    x_issue(True)
    vm_p = list(e.vm)
    e("s_barrier")
    e("s_branch L_G_xdone")
    e.label("L_G_nokvw")
    e("s_barrier")
    e.vm = []
    x_issue()
    e.label("L_G_xdone")
    e(f"v_and_b32 {vr(vr_)}, 31, v0")
    e(f"v_lshrrev_b32 {vr(vh)}, 5, v0")
    e(f"v_bfe_u32 {vr(vg)}, v0, 1, 3")
    e(f"v_lshlrev_b32 {vr(vr_)}, 7, {vr(vr_)}")
    e(f"v_add_u32 {vr(vr_)}, {sr(S_REG)}, {vr(vr_)}")
    for sp in range(4):
        e(f"v_add_u32 {vr(V_TMP)}, {2*sp}, {vr(vh)}")
        e(f"v_xor_b32 {vr(V_TMP)}, {vr(V_TMP)}, {vr(vg)}")
        e(f"v_lshl_add_u32 {vr(vXR+sp)}, {vr(V_TMP)}, 4, {vr(vr_)}")
    e(f"v_lshlrev_b32 {vr(vGWA)}, 4, {vr(vh)}")
    e(f"v_add_u32 {vr(vGWA)}, {GWL}, {vr(vGWA)}")
    tr_lane_parts(e, vr_, vc8, vg, vh)
    e(f"v_lshl_add_u32 {vr(V_TMP)}, {vr(vh)}, 3, {vr(vr_)}")
    e(f"v_lshl_add_u32 {vr(vTKV)}, {vr(V_TMP)}, 5, {vr(vc8)}")
    e(f"v_add_u32 {vr(vTKV)}, {WKV}, {vr(vTKV)}")
    e(f"v_lshl_add_u32 {vr(vTQ+1)}, {vr(V_TMP)}, 6, {vr(vc8)}")
    e(f"v_lshl_add_u32 {vr(vTQ+1)}, {vr(vg)}, 5, {vr(vTQ+1)}")
    e(f"v_add_u32 {vr(vTQ)}, {WQA}, {vr(vTQ+1)}")
    e(f"v_add_u32 {vr(vTQ+2)}, {2*REG}, {vr(vTQ+1)}")
    e(f"v_mul_u32_u24 {vr(V_TR)}, 192, {vr(V_TMP)}")
    e(f"v_add_u32 {vr(V_TR)}, {vr(V_TR)}, {vr(vc8)}")
    e(f"v_mul_u32_u24 {vr(V_TMP)}, {UPOFF}, {vr(vg)}")
    e(f"v_add_u32 {vr(V_TR)}, {vr(V_TR)}, {vr(V_TMP)}")
    e(f"v_add_u32 {vr(V_TR+1)}, {2*REG}, {vr(V_TR)}")
    u0_calc(e)
    w1s_calc(e, vr_, vc8)
    e("s_waitcnt lgkmcnt(0)")
    finish_tag(e)
    e.stamp(1, V_STAMP)

    def slab_reads(q):
        for sp in range(4):
            e.dsop(f"ds_read_b128 {vr(X0+4*(4*q+sp),4)}, {vr(vXR+sp)} offset:{slaboff(q)}", f"xr{q}")

    vm0 = list(e.vm)
    e(f"s_cmp_eq_u32 {sr(S_ROLE)}, 2")
    e("s_cbranch_scc1 L_G_p1n")
    e(f"s_cmp_eq_u32 {sr(S_ROLE)}, 1")
    e("s_cbranch_scc1 L_G_p1v")
    for which in (0, 1):
        e.vm = list(vm_p)
        e.ds = []
        if which == 1:
            e.label("L_G_p1v")
        e.comment("producer of %s" % ("K" if which == 0 else "V"))
        for q in range(8):
            e.wait_vm(f"x{q}")
            fb = FR + 16 * (q & 1)
            slab_reads(q)
            for sp in range(4):
                s = 4 * q + sp
                e.dsop(f"ds_read_b64_tr_b16 {vr(fb+4*sp,2)}, {vr(vTKV)} offset:{s*512}")
                e.dsop(f"ds_read_b64_tr_b16 {vr(fb+4*sp+2,2)}, {vr(vTKV)} offset:{s*512+128}")
            if q in (1, 3, 5):
                e.arrive(V_SX, V_ONE, 0)
            e.wait_ds_all()
            for sp in range(4):
                s = 4 * q + sp
                xa, wa = X0 + 4 * s, fb + 4 * sp
                c = "0" if s == 0 else None
                e(mfma(KVA, wa, xa, c) if which == 0 else mfma(KVA, xa, wa, c))
        e(f"s_lshl_b32 {sr(S_A)}, {sr(S_T)}, 11")
        e(f"s_add_u32 {sr(S_A)}, {sr(S_A)}, {WS_KV + which*1024}")
        if which == 0:
            e("s_nop 9")
            for i in range(4):
                e(f"v_cvt_pk_bf16_f32 {vr(FR+i)}, {vr(KVA+2*i)}, {vr(KVA+2*i+1)}")
            e.vmop(f"buffer_store_dwordx4 {vr(FR,4)}, {vr(V_L16)}, {sr(SWS,4)}, {sr(S_A)} offen sc1", "kvst")
        else:
            e(f"v_and_b32 {vr(FR+8)}, 15, v0")
            e(f"v_lshl_add_u32 {vr(FR+8)}, {vr(vh)}, 4, {vr(FR+8)}")
            e(f"v_lshlrev_b32 {vr(FR+8)}, 4, {vr(FR+8)}")
            e(f"v_lshl_add_u32 {vr(FR+8)}, {vr(vg)}, 9, {vr(FR+8)}")
            e("s_nop 5")
            for i in range(4):
                e(f"v_cvt_pk_bf16_f32 {vr(FR+i)}, {vr(KVA+2*i)}, {vr(KVA+2*i+1)}")
            e("s_mov_b32 exec_lo, 0xffff0000")
            e("s_mov_b32 exec_hi, 0xffff0000")
            for i in range(4):
                e(f"v_cvt_pk_bf16_f32 {vr(FR+i)}, {vr(KVA+8+2*i)}, {vr(KVA+8+2*i+1)}")
            e("s_mov_b64 exec, -1")
            e.vmop(f"buffer_store_dwordx4 {vr(FR,4)}, {vr(FR+8)}, {sr(SWS,4)}, {sr(S_A)} offen sc1", "kvst")
        e.stamp(11, V_STAMP)
        e(f"s_lshl_b32 {sr(S_A)}, {sr(S_T)}, 8")
        e(f"s_add_u32 {sr(S_A)}, {sr(S_A)}, {WS_FKV + which*128}")
        e.wait_vm("kvst")
        e.flag_store(V_TAG, sr(S_A))
        e.stamp(12, V_STAMP)
        e("s_branch L_G_p2")
    e.label("L_G_p1n")
    e.vm = list(vm0)
    e.ds = []
    for q in range(8):
        e.wait_vm(f"x{q}")
        slab_reads(q)
        if q in (1, 3, 5):
            e.arrive(V_SX, V_ONE, 0)
        if q in (2, 5):
            e.wait_ds_all()
    e.label("L_G_p2")
    e.vm = []
    e.ds = ["x"] * 8
    e.stamp(2, V_STAMP)

    for i in range(4):
        e(f"v_mov_b32 {vr(vZ+i)}, 0")
    e.lds_wait(V_SYNC, V_TMP, C_A, 4)
    e.stamp(13, V_STAMP)

    def q_reads(s):
        fb = FR + 8 * (s % 4)
        if s < 12:
            a, off = vTQ, s * 1024
        else:
            wv, i = divmod(s - 12, 5)
            a, off = (vTQ + 1 if wv < 2 else vTQ + 2), (wv & 1) * REG + MISC + i * 1024
        e.dsop(f"ds_read_b64_tr_b16 {vr(fb,2)}, {vr(a)} offset:{off}")
        e.dsop(f"ds_read_b64_tr_b16 {vr(fb+2,2)}, {vr(a)} offset:{off+256}")
        e.dsop(f"ds_read_b128 {vr(fb+4,4)}, {vr(vGWA)} offset:{s*32}", f"q{s}")

    def q_comp(s):
        fb = FR + 8 * (s % 4)
        e.wait_ds(f"q{s}")
        e(mfma(QA, fb, X0 + 4 * s, "0" if s == 0 else None))
        for i in range(4):
            e(f"v_dot2c_f32_bf16 {vr(vZ+i)}, {vr(X0+4*s+i)}, {vr(fb+4+i)}")

    def q_run(lo, hi):
        for s in range(lo, min(lo + 3, hi)):
            q_reads(s)
        for s in range(lo, hi):
            q_comp(s)
            if s + 3 < hi:
                q_reads(s + 3)

    q_run(0, 12)
    e.lds_wait(V_SYNC, V_TMP, C_B, 4)
    e.stamp(14, V_STAMP)
    q_run(12, 32)
    e("s_nop 2")
    e(f"v_add_f32 {vr(vZ)}, {vr(vZ)}, {vr(vZ+1)}")
    e(f"v_add_f32 {vr(vZ+2)}, {vr(vZ+2)}, {vr(vZ+3)}")
    e(f"v_add_f32 {vr(vZ)}, {vr(vZ)}, {vr(vZ+2)}")
    e(f"v_mov_b32 {vr(vZ+1)}, {vr(vZ)}")
    e("s_nop 1")
    e(f"v_permlane32_swap_b32 {vr(vZ)}, {vr(vZ+1)}")
    e(f"v_add_f32 {vr(vZ)}, {vr(vZ)}, {vr(vZ+1)}")
    e(f"v_mul_f32 {vr(vZ)}, {f32(LOG2E)}, {vr(vZ)}")
    e(f"v_min_f32 {vr(vZ+1)}, {f32(115.0)}, {vr(vZ)}")
    e(f"v_exp_f32 {vr(vZ+1)}, {vr(vZ+1)}")
    e(f"v_exp_f32 {vr(vZ+2)}, -{vr(vZ)}")
    e(f"v_add_f32 {vr(V_GC)}, 1.0, {vr(vZ+1)}")
    e(f"v_add_f32 {vr(vZ+2)}, 1.0, {vr(vZ+2)}")
    e(f"v_rcp_f32 {vr(vZ+2)}, {vr(vZ+2)}")
    e(f"s_mov_b32 {sr(S_A)}, {f32(QSCALE)}")
    for i in range(16):
        e(f"v_mul_f32 {vr(QA+i)}, {sr(S_A)}, {vr(QA+i)}")
    for i in range(8):
        e(f"v_cvt_pk_bf16_f32 {vr(FR+i)}, {vr(QA+2*i)}, {vr(QA+2*i+1)}")
    e(f"v_add_u32 {vr(V_TMP)}, {sr(S_REG)}, {vr(V_L16)}")
    e.dsop(f"ds_write_b128 {vr(V_TMP)}, {vr(FR,4)} offset:{QOFF}")
    e.dsop(f"ds_write_b128 {vr(V_TMP)}, {vr(FR+4,4)} offset:{QOFF+1024}")
    e(f"v_lshlrev_b32 {vr(vr_)}, 2, v0")
    e(f"v_add_u32 {vr(vr_)}, {sr(S_REG)}, {vr(vr_)}")
    e.dsop(f"ds_write_b32 {vr(vr_)}, {vr(vZ+2)} offset:{GOFF}")
    e.arrive(V_SYNC, V_ONE, C_Q)
    e.stamp(3, V_STAMP)

    w1_issue(e, 2)
    w1_issue(e, 3)
    e.lds_wait(V_SYNC, V_TMP, C_W, 4, GPRIO)
    seq = [(s, u) for s in range(32) for u in range(6)]

    def w1_read(n):
        s, u = seq[n]
        fb = WF + 4 * (n % 4)
        rg, sl = s & 3, (s >> 2) & 3
        off = (rg & 1) * REG + sl * SLOT + u * 32
        a = V_TR + (rg >> 1)
        e.dsop(f"ds_read_b64_tr_b16 {vr(fb,2)}, {vr(a)} offset:{off}")
        e.dsop(f"ds_read_b64_tr_b16 {vr(fb+2,2)}, {vr(a)} offset:{off+768}", f"f{n}")

    PD = 3
    for n in range(PD):
        w1_read(n)
    for n, (s, u) in enumerate(seq):
        g = s >> 2
        if (s & 3) == 2 and u == 0 and 2 <= g + 1 <= 7:
            e.wait_vm(f"w1_{g+1}")
            e.arrive(V_SYNC, V_ONE, C_W + 4 * (g + 1))
        if (s & 3) == 3 and u == 0 and g + 1 <= 7:
            e.poll_issue(V_SYNC, V_TMP, C_W + 4 * (g + 1), "poll")
        e.wait_ds(f"f{n}")
        e(mfma(ACC + 16 * u, WF + 4 * (n % 4), X0 + 4 * s, "0" if s == 0 else None))
        m = n + PD
        if m < len(seq):
            if seq[m][0] >> 2 != g and seq[m][1] == 0:
                e.wait_ds("poll")
                e.poll_check(V_SYNC, V_TMP, C_W + 4 * (g + 1), 4, GPRIO)
                if 4 <= g + 3 <= 7:
                    w1_issue(e, g + 3)
            w1_read(m)
    e.arrive(V_SYNC, V_ONE, C_W + 32)
    e.stamp(4, V_STAMP)

    vWD = 8
    vTD = 10
    e("s_setprio 2")
    e(f"v_bfe_u32 {vr(V_TMP)}, v0, 4, 1")
    e(f"v_lshlrev_b32 {vr(V_TMP)}, 2, {vr(V_TMP)}")
    e(f"v_and_b32 {vr(vWD)}, 7, v0")
    e(f"v_xor_b32 {vr(vWD)}, {vr(vWD)}, {vr(V_TMP)}")
    e(f"v_lshlrev_b32 {vr(vWD)}, 4, {vr(vWD)}")
    e(f"v_lshrrev_b32 {vr(V_TMP)}, 3, v0")
    e(f"v_lshl_add_u32 {vr(vWD)}, {vr(V_TMP)}, 10, {vr(vWD)}")
    e(f"s_and_b32 {sr(S_A)}, {sr(S_J)}, 7")
    e(f"s_lshl_b32 {sr(S_A)}, {sr(S_A)}, 7")
    e(f"v_add_u32 {vr(vWD)}, {sr(S_A)}, {vr(vWD)}")
    t0, t1, t2, t3 = WF, WF + 1, WF + 2, WF + 3
    tr_lane_parts(e, t0, t1, t2, t3)
    e(f"v_lshl_add_u32 {vr(t3)}, {vr(t3)}, 2, {vr(t0)}")
    e(f"v_lshl_add_u32 {vr(t1)}, {vr(t3)}, 7, {vr(t1)}")
    e(f"v_lshl_add_u32 {vr(t1)}, {vr(t2)}, 5, {vr(t1)}")
    e(f"v_lshrrev_b32 {vr(t0)}, 1, {vr(t0)}")
    e(f"v_lshl_add_u32 {vr(t1)}, {vr(t0)}, 6, {vr(t1)}")
    e(f"v_add_u32 {vr(vTD)}, {sr(S_REG)}, {vr(t1)}")
    e(f"v_xor_b32 {vr(vTD+1)}, 64, {vr(vTD)}")
    e(f"v_mov_b32 {vr(V_GK1)}, {f32(GK1)}")
    e("s_setprio 0")
    e(f"s_mul_i32 {sr(S_UW)}, {sr(S_W)}, 22")
    e(f"s_cmp_eq_u32 {sr(S_W)}, 3")
    e(f"s_cselect_b32 {sr(S_A)}, 1, 0")
    e(f"s_sub_u32 {sr(S_UW)}, {sr(S_UW)}, {sr(S_A)}")
    e(f"s_lshr_b32 {sr(S_A)}, {sr(S_J)}, 3")
    e(f"s_lshl_b32 {sr(S_A)}, {sr(S_A)}, 1")
    e(f"s_lshl_b32 {sr(S_T0)}, {sr(S_C)}, 2")
    e(f"s_add_u32 {sr(S_T0)}, {sr(S_T0)}, {sr(S_A)}")
    e(f"s_mov_b32 {sr(S_K2)}, {f32(GK2)}")
    e(f"s_mov_b32 {sr(S_K2+1)}, {f32(GK2)}")
    e.lds_wait(V_SYNC, V_TMP, C_W + 32, 4, GPRIO)

    e(f"s_mul_i32 {sr(S_A)}, {sr(S_ROT)}, 11")
    e(f"s_lshr_b32 {sr(S_A)}, {sr(S_A)}, 2")
    e(f"s_add_u32 {sr(S_WI)}, {sr(S_UW)}, {sr(S_A)}")
    e(f"s_mov_b32 {sr(S_HI)}, {sr(S_WI)}")
    e(f"s_cmp_lt_u32 {sr(S_W)}, 2")
    e(f"s_cselect_b32 {sr(S_A)}, 22, 21")
    e(f"s_add_u32 {sr(S_UE)}, {sr(S_UW)}, {sr(S_A)}")

    def advance(si):
        e(f"s_add_u32 {sr(si)}, {sr(si)}, 1")
        e(f"s_cmp_eq_u32 {sr(si)}, {sr(S_UE)}")
        e(f"s_cselect_b32 {sr(si)}, {sr(S_UW)}, {sr(si)}")

    def head_idx(k, dst):
        e(f"s_add_u32 {sr(dst)}, {sr(S_ROT)}, {k}")
        e(f"s_and_b32 {sr(dst)}, {sr(dst)}, 7")
        e(f"s_lshl_b32 {sr(S_A)}, {sr(S_W)}, 3")
        e(f"s_add_u32 {sr(dst)}, {sr(dst)}, {sr(S_A)}")

    def wd_issue(m):
        if m < 22:
            e(f"s_lshl_b32 {sr(S_B)}, {sr(S_WI)}, 14")
            advance(S_WI)
            s_ = SWD
        else:
            head_idx(m - 22, S_B)
            e(f"s_lshl_b32 {sr(S_B)}, {sr(S_B)}, 14")
            s_ = SWO
        for i in range(2):
            d = e.dma(s_, vWD, sr(S_SOFF), (S_REG, (m % 12) * 2048 + i * 1024), f"wd{m}")
            e(f"s_add_u32 {sr(S_SOFF)}, {sr(S_B)}, {i*8192}")
            e.dma_go(d)

    for m in range(12):
        wd_issue(m)
    e(f"s_mul_i32 {sr(S_HB)}, {sr(S_T)}, 86")
    e(f"s_add_u32 {sr(S_HB)}, {sr(S_HB)}, {sr(S_U0)}")
    e(f"s_lshl_b32 {sr(S_HB)}, {sr(S_HB)}, 10")
    e(f"s_add_u32 {sr(S_HB)}, {sr(S_HB)}, {WS_H}")
    e("s_setprio 2")
    TG = X0
    for u in range(6):
        z, up = ACC + 16 * u, ACC + 16 * u + 8
        tb = TG + 16 * (u & 1)
        for p in range(4):
            e(f"v_pk_mul_f32 {vr(tb+2*p,2)}, {vr(z+2*p,2)}, {vr(z+2*p,2)}")
        for p in range(4):
            e(f"v_pk_fma_f32 {vr(tb+2*p,2)}, {vr(tb+2*p,2)}, {sr(S_K2,2)}, {vr(V_GK1,2)} op_sel_hi:[1,1,0]")
        for p in range(4):
            e(f"v_pk_mul_f32 {vr(tb+2*p,2)}, {vr(tb+2*p,2)}, {vr(z+2*p,2)}")
        for p in range(8):
            e(f"v_exp_f32 {vr(tb+p)}, {vr(tb+p)}")
        for p in range(4):
            e(f"v_pk_mul_f32 {vr(z+2*p,2)}, {vr(z+2*p,2)}, {vr(up+2*p,2)}")
        for p in range(4):
            e(f"v_pk_fma_f32 {vr(tb+2*p,2)}, {vr(tb+2*p,2)}, {vr(V_GC,2)}, {vr(V_GC,2)} op_sel_hi:[1,0,0]")
        for p in range(8):
            e(f"v_rcp_f32 {vr(tb+p)}, {vr(tb+p)}")
        e("s_nop 0")
        for p in range(4):
            e(f"v_pk_mul_f32 {vr(z+2*p,2)}, {vr(z+2*p,2)}, {vr(tb+2*p,2)}")
        for p in range(4):
            e(f"v_cvt_pk_bf16_f32 {vr(tb+8+p)}, {vr(z+2*p)}, {vr(z+2*p+1)}")
        e(f"s_add_u32 {sr(S_SOFF)}, {sr(S_HB)}, {u*1024}")
        e.vmop(f"buffer_store_dwordx4 {vr(tb+8,4)}, {vr(V_L16)}, {sr(SWS,4)}, {sr(S_SOFF)} offen sc1", "hst")
    vFA = WF
    e(f"v_bfe_u32 {vr(vFA)}, v0, 1, 4")
    e(f"v_lshlrev_b32 {vr(vFA)}, 2, {vr(vFA)}")
    e(f"v_and_b32 {vr(V_TMP)}, 1, v0")
    e(f"v_add_u32 {vr(vFA)}, {vr(vFA)}, {vr(V_TMP)}")
    e(f"v_lshlrev_b32 {vr(vFA)}, 7, {vr(vFA)}")
    vFO = 9
    e(f"v_bfe_u32 {vr(vFO)}, v0, 1, 2")
    e(f"v_lshlrev_b32 {vr(vFO)}, 2, {vr(vFO)}")
    e(f"v_add_u32 {vr(vFO)}, {vr(vFO)}, {vr(V_TMP)}")
    e(f"v_lshlrev_b32 {vr(vFO)}, 7, {vr(vFO)}")
    e("s_setprio 0")
    e(f"s_lshl_b32 {sr(S_A)}, {sr(S_C)}, 4")
    e(f"s_add_u32 {sr(S_A)}, {sr(S_A)}, {sr(S_J)}")
    e(f"s_lshl_b32 {sr(S_A)}, {sr(S_A)}, 2")
    e(f"s_add_u32 {sr(S_A)}, {sr(S_A)}, {sr(S_W)}")
    e(f"s_lshl_b32 {sr(S_A)}, {sr(S_A)}, 7")
    e(f"s_add_u32 {sr(S_A)}, {sr(S_A)}, {WS_FH}")
    e.wait_vm("hst")
    e.flag_store(V_TAG, sr(S_A))
    e.stamp(5, V_STAMP)

    e(f"s_lshl_b32 {sr(S_B)}, {sr(S_C)}, 6")
    e(f"s_and_b32 {sr(S_A)}, {sr(S_T0)}, 3")
    e(f"s_add_u32 {sr(S_B)}, {sr(S_B)}, {sr(S_A)}")
    e(f"s_lshl_b32 {sr(S_EXP)}, {sr(S_B)}, 7")
    e(f"s_add_u32 {sr(S_B)}, {sr(S_EXP)}, {WS_FH}")
    e.gpoll(vFA, WF + 2, GPRIO, sr(S_B))
    e.stamp(6, V_STAMP)
    e(f"s_mul_i32 {sr(S_HB)}, {sr(S_T0)}, {86*1024}")
    e(f"s_add_u32 {sr(S_HB)}, {sr(S_HB)}, {WS_H}")
    HR = 128

    def h_issue(k):
        e(f"s_lshl_b32 {sr(S_B)}, {sr(S_HI)}, 10")
        e(f"s_add_u32 {sr(S_B)}, {sr(S_B)}, {sr(S_HB)}")
        advance(S_HI)
        for tt in range(2):
            if tt:
                e(f"s_add_u32 {sr(S_B)}, {sr(S_B)}, {86*1024}")
            d = HR + 8 * (k % 16) + 4 * tt
            e.vmop(f"buffer_load_dwordx4 {vr(d,4)}, {vr(V_L16)}, {sr(SWS,4)}, {sr(S_B)} offen sc1", f"h{k}")

    def wd_read(m, dst):
        for ct in range(2):
            off = (m % 12) * 2048
            e.dsop(f"ds_read_b64_tr_b16 {vr(dst+4*ct,2)}, {vr(vTD+ct)} offset:{off}")
            e.dsop(f"ds_read_b64_tr_b16 {vr(dst+4*ct+2,2)}, {vr(vTD+ct)} offset:{off+1024}", f"wf{m}")

    for k in range(16):
        h_issue(k)
    wd_read(0, WF)
    A2 = ACC
    for k in range(22):
        if k + 1 < 22:
            e.wait_vm(f"wd{k+1}")
            wd_read(k + 1, WF + 8 * ((k + 1) & 1))
        e.wait_vm(f"h{k}")
        e.wait_ds(f"wf{k}")
        if k == 21:
            e(f"s_cmp_ge_u32 {sr(S_W)}, 2")
            e("s_cbranch_scc1 L_G_skip21")
        for tt in range(2):
            for ct in range(2):
                e(mfma(A2 + 16 * (2 * tt + ct), WF + 8 * (k & 1) + 4 * ct, HR + 8 * (k % 16) + 4 * tt,
                       "0" if k == 0 else None))
        if k == 21:
            e.label("L_G_skip21")
        if k + 12 < 30:
            wd_issue(k + 12)
        if k + 16 < 22:
            h_issue(k + 16)
    e.stamp(7, V_STAMP)

    WOF, OF = 128, 192
    for i in range(8):
        e.wait_vm(f"wd{22+i}")
        if len(e.ds) > 8:
            e.wait_ds(f"wf{22+i-2}")
        wd_read(22 + i, WOF + 8 * i)
    e(f"s_lshl_b32 {sr(S_A)}, {sr(S_W)}, 11")
    e(f"s_add_u32 {sr(S_B)}, {sr(S_EXP)}, {sr(S_A)}")
    e(f"s_add_u32 {sr(S_B)}, {sr(S_B)}, {WS_FO}")
    e(f"s_lshl_b32 {sr(S_HB)}, {sr(S_T0)}, 15")
    e(f"s_add_u32 {sr(S_HB)}, {sr(S_HB)}, {WS_O}")
    e.wait_ds_all()
    e.stamp(8, V_STAMP)
    e.gpoll(vFO, WF + 2, GPRIO, sr(S_B))
    e("s_setprio 1")
    e.stamp(9, V_STAMP)
    for k in range(8):
        head_idx(k, S_B)
        e(f"s_lshl_b32 {sr(S_B)}, {sr(S_B)}, 10")
        e(f"s_add_u32 {sr(S_B)}, {sr(S_B)}, {sr(S_HB)}")
        for tt in range(2):
            e(f"s_add_u32 {sr(S_SOFF)}, {sr(S_B)}, {tt*32*1024}")
            e.vmop(f"buffer_load_dwordx4 {vr(OF+8*k+4*tt,4)}, {vr(V_L16)}, {sr(SWS,4)}, {sr(S_SOFF)} offen sc1", f"o{k}")
    vRW, vRR, vOA = 8, 10, 12
    e(f"v_add_u32 {vr(vRW)}, {sr(S_REG)}, {vr(V_L16)}")
    e(f"s_lshl_b32 {sr(S_A)}, {sr(S_W)}, 12")
    e(f"v_add_u32 {vr(vRR)}, {sr(S_A)}, {vr(V_L16)}")
    e(f"v_add_u32 {vr(vRR+1)}, {2*REG}, {vr(vRR)}")
    e(f"v_and_b32 {vr(vOA)}, 31, v0")
    e(f"v_lshlrev_b32 {vr(vOA)}, 10, {vr(vOA)}")
    e(f"v_lshrrev_b32 {vr(V_TMP)}, 5, v0")
    e(f"v_lshl_add_u32 {vr(vOA)}, {vr(V_TMP)}, 4, {vr(vOA)}")
    e(f"s_lshr_b32 {sr(S_A)}, {sr(S_W)}, 1")
    e(f"s_add_u32 {sr(S_A)}, {sr(S_A)}, {sr(S_T0)}")
    e(f"s_lshl_b32 {sr(S_A)}, {sr(S_A)}, 15")
    e(f"s_and_b32 {sr(S_B)}, {sr(S_J)}, 7")
    e(f"s_lshl_b32 {sr(S_B)}, {sr(S_B)}, 7")
    e(f"s_add_u32 {sr(S_A)}, {sr(S_A)}, {sr(S_B)}")
    e(f"s_and_b32 {sr(S_B)}, {sr(S_W)}, 1")
    e(f"s_lshl_b32 {sr(S_B)}, {sr(S_B)}, 6")
    e(f"s_add_u32 {sr(S_KOFF)}, {sr(S_A)}, {sr(S_B)}")
    for k in range(8):
        e.wait_vm(f"o{k}")
        for tt in range(2):
            for ct in range(2):
                e(mfma(A2 + 16 * (2 * tt + ct), WOF + 8 * k + 4 * ct, OF + 8 * k + 4 * tt))
    e("s_nop 8")
    for t in range(4):
        for q in range(4):
            if len(e.ds) >= 12:
                e.wait_ds(f"rw{t-2}")
            e.dsop(f"ds_write_b128 {vr(vRW)}, {vr(A2+16*t+4*q,4)} offset:{t*4096 + q*1024}", f"rw{t}")
    e.wait_ds("rw2")
    e.arrive(V_SYNC, V_ONE, C_R)
    e.lds_wait(V_SYNC, V_TMP, C_R, 4)
    RD = 128
    for p in range(4):
        if p == 3:
            e.wait_ds("rr0")
        for q in range(4):
            e.dsop(f"ds_read_b128 {vr(RD+16*p+4*q,4)}, {vr(vRR+(p>>1))} offset:{(p&1)*REG + q*1024}", f"rr{p}")
    e.wait_ds("rr1")
    for i in range(8):
        e(f"v_pk_add_f32 {vr(RD+2*i,2)}, {vr(RD+2*i,2)}, {vr(RD+16+2*i,2)}")
    e.wait_ds("rr3")
    for i in range(8):
        e(f"v_pk_add_f32 {vr(RD+32+2*i,2)}, {vr(RD+32+2*i,2)}, {vr(RD+48+2*i,2)}")
    for i in range(8):
        e(f"v_pk_add_f32 {vr(RD+2*i,2)}, {vr(RD+2*i,2)}, {vr(RD+32+2*i,2)}")
    PK = RD + 64
    for i in range(8):
        e(f"v_cvt_pk_bf16_f32 {vr(PK+i)}, {vr(RD+2*i)}, {vr(RD+2*i+1)}")
    e("s_nop 1")
    for b in (0, 4):
        e(f"v_permlane32_swap_b32 {vr(PK+b)}, {vr(PK+b+2)}")
        e(f"v_permlane32_swap_b32 {vr(PK+b+1)}, {vr(PK+b+3)}")
    e(f"buffer_store_dwordx4 {vr(PK,4)}, {vr(vOA)}, {sr(SOUT,4)}, {sr(S_KOFF)} offen")
    e(f"buffer_store_dwordx4 {vr(PK+4,4)}, {vr(vOA)}, {sr(SOUT,4)}, {sr(S_KOFF)} offen offset:32")
    e.stamp(10, V_STAMP)
    diag_end(e)
    e("s_endpgm")


def gen_A(e):
    QF = 16
    KB = 24
    VB = 32
    SA, SB = 48, 64
    PA, PB = 80, 88
    OA, OB = 96, 112
    vAK, vAV0, vAV1 = 128, 131, 134
    vG = 137
    vT = 138
    e.label("L_A")
    e.vm = []
    e.ds = []
    e("s_barrier")
    vWQS = 13
    e(f"v_lshrrev_b32 {vr(vWQS)}, 2, v0")
    e(f"v_lshlrev_b32 {vr(vWQS)}, 10, {vr(vWQS)}")
    e(f"v_and_b32 {vr(V_TMP)}, 3, v0")
    e(f"v_lshl_add_u32 {vr(vWQS)}, {vr(V_TMP)}, 4, {vr(vWQS)}")
    e(f"s_lshl_b32 {sr(S_A)}, {sr(S_J)}, 6")
    e(f"v_add_u32 {vr(vWQS)}, {sr(S_A)}, {vr(vWQS)}")
    u0_calc(e)
    w1s_calc(e, vT, vT + 1)
    e(f"v_add_u32 {vr(vAK)}, {R1}, {vr(V_L16)}")
    e(f"v_mov_b32 {vr(vAK+1)}, {vr(V_L16)}")
    e(f"v_add_u32 {vr(vAK+2)}, {2*REG}, {vr(V_L16)}")
    e(f"v_and_b32 {vr(vT)}, 15, v0")
    e(f"v_lshrrev_b32 {vr(V_TMP)}, 5, v0")
    e(f"v_lshl_add_u32 {vr(vT)}, {vr(V_TMP)}, 4, {vr(vT)}")
    e(f"v_lshlrev_b32 {vr(vT)}, 4, {vr(vT)}")
    e(f"v_add_u32 {vr(vAV0+1)}, 1024, {vr(vT)}")
    e(f"v_add_u32 {vr(vAV1+1)}, 1536, {vr(vT)}")
    e("s_mov_b32 exec_lo, 0xffff0000")
    e("s_mov_b32 exec_hi, 0xffff0000")
    e(f"v_mov_b32 {vr(vAV0+1)}, 2048")
    e(f"v_mov_b32 {vr(vAV1+1)}, 2048")
    e("s_mov_b64 exec, -1")
    for b in (vAV0, vAV1):
        e(f"v_add_u32 {vr(b)}, {R1}, {vr(b+1)}")
        e(f"v_add_u32 {vr(b+2)}, {2*REG}, {vr(b+1)}")
    e(f"s_mul_i32 {sr(S_A)}, {sr(S_W)}, {KVT}")
    for gs in range(3):
        e(f"s_add_u32 {sr(S_M0+gs)}, {sr(S_A)}, {R1 + gs*KVG}")
    e(f"s_add_u32 {sr(S_M0+3)}, {sr(S_REG)}, {MISC}")
    vF = vT + 2
    e(f"v_bfe_u32 {vr(vF)}, v0, 1, 4")
    e(f"v_lshlrev_b32 {vr(vF)}, 3, {vr(vF)}")
    e(f"v_and_b32 {vr(V_TMP)}, 1, v0")
    e(f"v_add_u32 {vr(vF)}, {vr(vF)}, {vr(V_TMP)}")
    e(f"v_lshlrev_b32 {vr(vF)}, 7, {vr(vF)}")
    for i in range(16):
        e(f"v_mov_b32 {vr(OA+i)}, 0")
        e(f"v_mov_b32 {vr(OB+i)}, 0")
    for i in range(8):
        e(f"v_mov_b32 {vr(PB+i)}, 0")
        e(f"v_mov_b32 {vr(VB+8+i)}, 0")
    e(f"v_mov_b32 {vr(SB+14)}, 0")
    e(f"v_mov_b32 {vr(SB+15)}, 0")
    ON = vT + 4
    for i in range(4):
        e(f"v_mov_b32 {vr(ON+i)}, 0x3f803f80")
    e(f"s_lshl_b32 {sr(S_A)}, {sr(S_ROT)}, 7")
    e(f"v_add_u32 {vr(vT)}, {sr(S_A)}, {vr(V_L16)}")
    e(f"v_and_b32 {vr(vT)}, 1023, {vr(vT)}")
    e(f"s_mov_b32 m0, {GWL}")
    e(f"s_mul_i32 {sr(S_A)}, {sr(S_W)}, 3")
    e.vmop(f"buffer_load_dwordx4 {vr(vT)}, {sr(SGW,4)}, 0 offen lds", "wqa")
    e(f"s_lshl_b32 {sr(S_B)}, {sr(S_ROT)}, 2")
    e(f"s_add_u32 {sr(S_B)}, {sr(S_B)}, {sr(S_A)}")
    e(f"s_lshl_b32 {sr(S_A)}, {sr(S_A)}, 10")
    for i in range(3):
        e(f"s_add_u32 {sr(S_SOFF)}, {sr(S_B)}, {i}")
        e(f"s_and_b32 {sr(S_SOFF)}, {sr(S_SOFF)}, 31")
        e(f"s_add_u32 m0, {sr(S_A)}, {WQA + i*1024}")
        e(f"s_lshl_b32 {sr(S_SOFF)}, {sr(S_SOFF)}, 14")
        e.vmop(f"buffer_load_dwordx4 {vr(vWQS)}, {sr(SWQ,4)}, {sr(S_SOFF)} offen lds", "wqa")
    e.stamp(1, V_STAMP)
    e.lds_wait(V_SX, V_TMP, 0, 1)
    finish_tag(e)
    e(f"s_mul_i32 {sr(S_B)}, {sr(S_W)}, 5")
    e(f"s_lshl_b32 {sr(S_A)}, {sr(S_ROT)}, 2")
    e(f"s_add_u32 {sr(S_B)}, {sr(S_B)}, {sr(S_A)}")
    for i in range(5):
        e(f"s_add_u32 {sr(S_SOFF)}, {sr(S_B)}, {12+i}")
        e(f"s_and_b32 {sr(S_SOFF)}, {sr(S_SOFF)}, 31")
        d = e.dma(SWQ, vWQS, sr(S_SOFF), (S_REG, MISC + i * 1024), "wqb")
        e(f"s_lshl_b32 {sr(S_SOFF)}, {sr(S_SOFF)}, 14")
        e.dma_go(d)
    e.wait_vm("wqa")
    e.arrive(V_SYNC, V_ONE, C_A)
    e.lds_wait(V_SX, V_TMP, 0, 2)
    w1_issue(e, 0)
    e.wait_vm("wqb")
    e.arrive(V_SYNC, V_ONE, C_B)
    e.lds_wait(V_SX, V_TMP, 0, 3)
    w1_issue(e, 1)
    e.wait_vm("w1_0")
    e.arrive(V_SYNC, V_ONE, C_W)
    e.wait_vm("w1_1")
    e.arrive(V_SYNC, V_ONE, C_W + 4)
    e.stamp(7, V_STAMP)
    e(f"s_and_b32 {sr(S_A)}, s2, 7")
    e(f"s_lshl_b32 {sr(S_A)}, {sr(S_A)}, 3")
    e(f"s_add_u32 {sr(S_A)}, {sr(S_A)}, {sr(S_W)}")
    e(f"s_lshl_b32 {sr(S_KOFF)}, {sr(S_A)}, 11")
    e(f"s_lshl_b32 {sr(S_B)}, {sr(S_W)}, 8")
    e(f"s_add_u32 {sr(S_B)}, {sr(S_B)}, {WS_FKV}")
    e.gpoll(vF, vT, None, sr(S_B))
    e.stamp(2, V_STAMP)
    e.lds_wait(V_SYNC, V_TMP, C_Q, 4)
    e.stamp(3, V_STAMP)
    e("s_setprio 1")

    def kv_dma(gs):
        e(f"s_mov_b32 m0, {sr(S_M0+gs)}")
        e(f"s_add_u32 {sr(S_SOFF)}, {sr(S_KOFF)}, {WS_KV}")
        e(f"buffer_load_dwordx4 {vr(V_L16)}, {sr(SWS,4)}, {sr(S_SOFF)} offen sc1 lds")
        e(f"buffer_load_dwordx4 {vr(V_L16)}, {sr(SWS,4)}, {sr(S_SOFF)} offen offset:1024 sc1 lds")
        e(f"s_add_u32 {sr(S_KOFF)}, {sr(S_KOFF)}, 8192")
        e(f"s_and_b32 {sr(S_KOFF)}, {sr(S_KOFF)}, 0x1ffff")

    for gs in range(3):
        kv_dma(gs)
    e(f"v_add_u32 {vr(vT)}, {sr(S_REG)}, {vr(V_L16)}")
    e.dsop(f"ds_read_b128 {vr(QF,4)}, {vr(vT)} offset:{QOFF}")
    e.dsop(f"ds_read_b128 {vr(QF+4,4)}, {vr(vT)} offset:{QOFF+1024}")
    e(f"v_lshlrev_b32 {vr(vT+1)}, 2, v0")
    e(f"v_add_u32 {vr(vT+1)}, {sr(S_REG)}, {vr(vT+1)}")
    e.dsop(f"ds_read_b32 {vr(vG)}, {vr(vT+1)} offset:{GOFF}")
    e("s_mov_b64 exec, 1")
    for gs in range(4):
        e(f"v_mov_b32 {vr(vT+2)}, {sr(S_M0+gs)}")
        e.dsop(f"ds_write_b128 {vr(vT+2)}, {vr(ON,4)} offset:2048")
    e("s_mov_b64 exec, -1")
    e("s_waitcnt vmcnt(4)")
    e.arrive(V_SYNC, V_ONE, C_KV)
    e.lds_wait(V_SYNC, V_TMP, C_KV, 4)

    def ring(t):
        gs, i = (t >> 2) & 3, t & 3
        if gs < 3:
            return 0, gs * KVG + i * KVT
        return 1 + (i >> 1), (i & 1) * REG + MISC

    def rdK(t):
        b, off = ring(t)
        return f"ds_read_b128 {vr(KB+4*(t&1),4)}, {vr(vAK+b)} offset:{off}"

    def rdV(t, blk):
        b, off = ring(t)
        return f"ds_read_b128 {vr(VB+8*(t&1)+4*blk,4)}, {vr((vAV1 if blk else vAV0)+b)} offset:{off}"

    e(rdK(0))
    e(rdK(1))
    e(rdV(0, 0))
    e(rdV(0, 1))
    e(f"s_mov_b32 {sr(S_EXP)}, 4")
    e(f"s_mov_b32 {sr(S_IT)}, 4")
    e("s_waitcnt lgkmcnt(0)")
    e.ds = []
    e(mfma(SA, KB, QF, "0"))
    e.stamp(4, V_STAMP)
    e("s_nop 11")
    e(".p2align 6")
    e.label("L_A_loop")
    for t in range(16):
        p, gi = t & 3, t >> 2
        S = lambda i: (SA + i if i < 16 else SB + i - 16)
        P = lambda i: (PA + i if i < 8 else PB + i - 8)
        V = [f"v_exp_f32 {vr(S(0))}, {vr(S(0))}", f"v_cvt_pk_bf16_f32 {vr(P(15))}, {vr(S(30))}, {vr(S(31))}"]
        for i in range(15):
            V += [f"v_exp_f32 {vr(S(2*i+1))}, {vr(S(2*i+1))}", f"v_exp_f32 {vr(S(2*i+2))}, {vr(S(2*i+2))}",
                  f"v_cvt_pk_bf16_f32 {vr(P(i))}, {vr(S(2*i))}, {vr(S(2*i+1))}"]
        V += [f"v_exp_f32 {vr(S(31))}, {vr(S(31))}"]
        assert len(V) == 48
        kc, kn = KB + 4 * (t & 1), KB + 4 * ((t + 1) & 1)
        vc, vp = VB + 8 * (t & 1), VB + 8 * ((t + 1) & 1)
        M = {1: mfma(SB, kc, QF + 4, "0"), 9: mfma(OB, vp, PB), 17: mfma(OB, vp + 4, PB + 4),
             25: mfma(SA, kn, QF, "0"), 33: mfma(OA, vc, PA), 41: mfma(OA, vc + 4, PA + 4)}
        slot = {1: [], 9: [], 17: ["s_waitcnt lgkmcnt(0)"], 25: [rdK(t + 2)], 33: [rdV(t + 1, 0)], 41: [rdV(t + 1, 1)]}
        extra = {}
        nslot = (gi + 1) & 3
        if p == 0:
            slot[1] = ["s_waitcnt vmcnt(2)"]
            slot[9] = [f"ds_add_u32 {vr(V_SYNC)}, {vr(V_ONE)} offset:{C_KV + 4*nslot}"]
            slot[17] = ["s_waitcnt lgkmcnt(1)"]
        if p == 1:
            slot[1] = [f"s_add_u32 {sr(S_SOFF)}, {sr(S_KOFF)}, {WS_KV}"]
            slot[9] = [f"s_add_u32 {sr(S_KOFF)}, {sr(S_KOFF)}, 8192"]
        if p == 2:
            slot[1] = [f"ds_read_b32 {vr(V_TMP)}, {vr(V_SYNC)} offset:{C_KV + 4*nslot}"]
            slot[9] = [f"s_and_b32 {sr(S_KOFF)}, {sr(S_KOFF)}, 0x1ffff"]
            if gi == 3:
                slot[9].append(f"s_add_u32 {sr(S_EXP)}, {sr(S_EXP)}, 4")
            extra[20] = "check"
        if p == 3:
            slot[1] = [f"s_mov_b32 m0, {sr(S_M0 + ((gi + 3) & 3))}"]
            slot[9] = [f"buffer_load_dwordx4 {vr(V_L16)}, {sr(SWS,4)}, {sr(S_SOFF)} offen sc1 lds",
                       f"buffer_load_dwordx4 {vr(V_L16)}, {sr(SWS,4)}, {sr(S_SOFF)} offen offset:1024 sc1 lds"]
        for i, ins in enumerate(V):
            e(ins)
            if i in M:
                e(M[i])
                for x in slot[i]:
                    e(x)
            if i in extra:
                e.poll_check(V_SYNC, V_TMP, C_KV + 4 * nslot, sr(S_EXP))
        if t == 15:
            e(f"s_sub_u32 {sr(S_IT)}, {sr(S_IT)}, 1")
            e(f"s_cmp_lg_u32 {sr(S_IT)}, 0")
            e("s_cbranch_scc1 L_A_loop")
    e("s_nop 0")
    e(f"v_cvt_pk_bf16_f32 {vr(PB+7)}, {vr(SB+14)}, {vr(SB+15)}")
    e("s_nop 1")
    e(mfma(OB, VB + 8, PB))
    e(mfma(OB, VB + 12, PB + 4))
    e.stamp(5, V_STAMP)
    e(f"s_lshl_b32 {sr(S_HB)}, {sr(S_T)}, 5")
    e(f"s_lshl_b32 {sr(S_A)}, {sr(S_J)}, 1")
    e(f"s_add_u32 {sr(S_HB)}, {sr(S_HB)}, {sr(S_A)}")
    e(f"s_lshl_b32 {sr(S_HB)}, {sr(S_HB)}, 10")
    e(f"s_add_u32 {sr(S_HB)}, {sr(S_HB)}, {WS_O}")
    e(f"s_mov_b32 {sr(S_A)}, {f32(2.0**-40)}")
    e(f"s_mov_b32 {sr(S_B)}, {f32(2.0**40)}")
    e(f"s_mov_b32 {sr(S_EXP)}, {f32(2.0**126)}")
    e("s_nop 3")
    e(f"v_add_f32 {vr(vT)}, |{vr(OA)}|, |{vr(OA+1)}|")
    e(f"v_add_f32 {vr(vT+1)}, |{vr(OB)}|, |{vr(OB+1)}|")
    for i in range(2, 8):
        e(f"v_add_f32 {vr(vT)}, |{vr(OA+i)}|, {vr(vT)}")
        e(f"v_add_f32 {vr(vT+1)}, |{vr(OB+i)}|, {vr(vT+1)}")
    e(f"v_add_f32 {vr(vT)}, {vr(vT)}, {vr(vT+1)}")
    e(f"v_cmp_nge_f32 vcc, {sr(S_EXP)}, {vr(vT)}")
    e("s_mov_b64 s[34:35], vcc")
    for o_ in (OA, OB):
        e(f"v_cmp_nle_f32 vcc, {sr(S_A)}, {vr(o_+8)}")
        e("s_or_b64 s[34:35], s[34:35], vcc")
        e(f"v_cmp_nge_f32 vcc, {sr(S_B)}, {vr(o_+8)}")
        e("s_or_b64 s[34:35], s[34:35], vcc")
    e("s_cmp_lg_u64 s[34:35], 0")
    e("s_cbranch_scc1 L_A_slow")
    e.label("L_A_fin")
    e(f"v_rcp_f32 {vr(vT)}, {vr(OA+8)}")
    e(f"v_rcp_f32 {vr(vT+1)}, {vr(OB+8)}")
    e("s_nop 0")
    e(f"v_mul_f32 {vr(vT)}, {vr(vT)}, {vr(vG)}")
    e(f"v_mul_f32 {vr(vT+1)}, {vr(vT+1)}, {vr(vG)}")
    for o_, t_, p_ in ((OA, vT, PA), (OB, vT + 1, PB)):
        for i in range(8):
            e(f"v_mul_f32 {vr(o_+i)}, {vr(o_+i)}, {vr(t_)}")
        for i in range(4):
            e(f"v_cvt_pk_bf16_f32 {vr(p_+i)}, {vr(o_+2*i)}, {vr(o_+2*i+1)}")
    e(f"buffer_store_dwordx4 {vr(PA,4)}, {vr(V_L16)}, {sr(SWS,4)}, {sr(S_HB)} offen sc1")
    e(f"buffer_store_dwordx4 {vr(PB,4)}, {vr(V_L16)}, {sr(SWS,4)}, {sr(S_HB)} offen offset:1024 sc1")
    e(f"s_lshl_b32 {sr(S_A)}, {sr(S_C)}, 4")
    e(f"s_add_u32 {sr(S_A)}, {sr(S_A)}, {sr(S_J)}")
    e(f"s_lshl_b32 {sr(S_A)}, {sr(S_A)}, 2")
    e(f"s_add_u32 {sr(S_A)}, {sr(S_A)}, {sr(S_W)}")
    e(f"s_lshl_b32 {sr(S_A)}, {sr(S_A)}, 7")
    e(f"s_add_u32 {sr(S_A)}, {sr(S_A)}, {WS_FO}")
    e("s_waitcnt vmcnt(0)")
    e.vm = []
    e.flag_store(V_TAG, sr(S_A))
    e.stamp(6, V_STAMP)
    e(f"s_or_b32 {sr(S_A)}, s2, {sr(S_W)}")
    e(f"s_cmp_lg_u32 {sr(S_A)}, 0")
    e("s_cbranch_scc1 L_A_end")
    e(f"v_lshlrev_b32 {vr(vT+2)}, 9, v0")
    for i in range(4):
        e(f"s_mov_b32 {sr(S_B)}, {WS_FH + i*64*512}")
        e.gpoll(vT + 2, vT, None, sr(S_B))
    e(f"s_mov_b32 {sr(S_A)}, {WS_EPOCH}")
    e.flag_store(V_TAG, sr(S_A))
    e.label("L_A_end")
    diag_end(e)
    e("s_endpgm")

    e.label("L_A_slow")
    CA, CB = 144, 160
    KT = 176
    VT = 180
    vMA, vMB = 188, 189
    vVA = 190
    e(f"v_lshlrev_b32 {vr(vT+2)}, 7, v0")
    for i in range(2):
        e(f"s_mov_b32 {sr(S_B)}, {WS_FKV + i*64*128}")
        e.gpoll(vT + 2, vT, None, sr(S_B))
    e(f"v_mov_b32 {vr(vMA)}, 0xff800000")
    e(f"v_mov_b32 {vr(vMB)}, 0xff800000")
    e(f"s_mov_b32 {sr(S_SOFF)}, {WS_KV}")
    e.label("L_A_slow1")
    e(f"buffer_load_dwordx4 {vr(KT,4)}, {vr(V_L16)}, {sr(SWS,4)}, {sr(S_SOFF)} offen sc1")
    e("s_waitcnt vmcnt(0)")
    e(mfma(SA, KT, QF, "0"))
    e(mfma(SB, KT, QF + 4, "0"))
    e("s_nop 11")
    for s_, m_ in ((SA, vMA), (SB, vMB)):
        for i in range(8):
            e(f"v_max3_f32 {vr(m_)}, {vr(s_+2*i)}, {vr(s_+2*i+1)}, {vr(m_)}")
    e(f"s_add_u32 {sr(S_SOFF)}, {sr(S_SOFF)}, 2048")
    e(f"s_cmp_lt_u32 {sr(S_SOFF)}, {WS_KV + 64*2048}")
    e("s_cbranch_scc1 L_A_slow1")
    for m_, c_ in ((vMA, CA), (vMB, CB)):
        e(f"v_mov_b32 {vr(vT)}, {vr(m_)}")
        e("s_nop 1")
        e(f"v_permlane32_swap_b32 {vr(m_)}, {vr(vT)}")
        e(f"v_max_f32 {vr(m_)}, {vr(m_)}, {vr(vT)}")
        for i in range(16):
            e(f"v_sub_f32 {vr(c_+i)}, 0, {vr(m_)}")
    for i in range(16):
        e(f"v_mov_b32 {vr(OA+i)}, 0")
        e(f"v_mov_b32 {vr(OB+i)}, 0")
    for i in range(8):
        e(f"v_mov_b32 {vr(VT+i)}, 0x3f803f80")
    e(f"v_and_b32 {vr(vVA)}, 15, v0")
    e(f"v_lshrrev_b32 {vr(vT)}, 5, v0")
    e(f"v_lshl_add_u32 {vr(vVA)}, {vr(vT)}, 4, {vr(vVA)}")
    e(f"v_lshlrev_b32 {vr(vVA)}, 4, {vr(vVA)}")
    e(f"s_mov_b32 {sr(S_SOFF)}, {WS_KV}")
    e.label("L_A_slow2")
    e(f"buffer_load_dwordx4 {vr(KT,4)}, {vr(V_L16)}, {sr(SWS,4)}, {sr(S_SOFF)} offen sc1")
    e("s_mov_b32 exec_lo, 0x0000ffff")
    e("s_mov_b32 exec_hi, 0x0000ffff")
    e(f"buffer_load_dwordx4 {vr(VT,4)}, {vr(vVA)}, {sr(SWS,4)}, {sr(S_SOFF)} offen offset:1024 sc1")
    e(f"buffer_load_dwordx4 {vr(VT+4,4)}, {vr(vVA)}, {sr(SWS,4)}, {sr(S_SOFF)} offen offset:1536 sc1")
    e("s_mov_b64 exec, -1")
    e("s_waitcnt vmcnt(0)")
    e(mfma(SA, KT, QF, vr(CA, 16)))
    e(mfma(SB, KT, QF + 4, vr(CB, 16)))
    e("s_nop 11")
    for s_ in (SA, SB):
        for i in range(16):
            e(f"v_exp_f32 {vr(s_+i)}, {vr(s_+i)}")
    e("s_nop 0")
    for s_, p_ in ((SA, PA), (SB, PB)):
        for i in range(8):
            e(f"v_cvt_pk_bf16_f32 {vr(p_+i)}, {vr(s_+2*i)}, {vr(s_+2*i+1)}")
    e("s_nop 1")
    e(mfma(OA, VT, PA))
    e(mfma(OA, VT + 4, PA + 4))
    e(mfma(OB, VT, PB))
    e(mfma(OB, VT + 4, PB + 4))
    e(f"s_add_u32 {sr(S_SOFF)}, {sr(S_SOFF)}, 2048")
    e(f"s_cmp_lt_u32 {sr(S_SOFF)}, {WS_KV + 64*2048}")
    e("s_cbranch_scc1 L_A_slow2")
    e("s_nop 11")
    e("s_branch L_A_fin")


def main():
    e = K()
    gen_entry(e)
    gen_G(e)
    gen_A(e)
    for c in e.cold:
        e.lines.append(c)
    e.label("L_exit")
    e("s_endpgm")
    probs = check_text(e.lines)
    for p in probs:
        print("HAZARD", p, file=sys.stderr)
    ref = open("cdna_kernels/" + NAME + ".s.ref").read().split("\n")
    hdr = [l for l in ref if l.startswith(";") and "@launch" not in l and not l.startswith("; Override") and not l.startswith("; grid=")]
    out = "\n".join(hdr) + "\n"
    out += f"; @launch grid=(256,1,1) block=(512,1,1) lds={LDS_BYTES}\n"
    out += '.amdgcn_target "amdgcn-amd-amdhsa--gfx950"\n.text\n'
    out += f".globl {NAME}_kernel\n.p2align 8\n.type {NAME}_kernel,@function\n{NAME}_kernel:\n"
    out += e.text()
    out += f""".section .rodata,"a"
.p2align 6
.amdhsa_kernel {NAME}_kernel
  .amdhsa_next_free_vgpr 256
  .amdhsa_next_free_sgpr 102
  .amdhsa_accum_offset 256
  .amdhsa_group_segment_fixed_size 0
  .amdhsa_kernarg_size 104
  .amdhsa_user_sgpr_count 2
  .amdhsa_user_sgpr_kernarg_segment_ptr 1
  .amdhsa_system_sgpr_workgroup_id_x 1
.end_amdhsa_kernel
"""
    args = [a for a in sys.argv[1:] if not a.startswith("--")]
    path = args[0] if args else "cdna_kernels/" + NAME + ".s"
    open(path, "w").write(out)
    print("wrote", path, "instructions:", sum(1 for l in e.lines if not (l.endswith(":") or l[0] in ";.")),
          "hazards:", len(probs))


main()
```
